```python
import torch

def _softmax(x, axis=-1):
    return torch.softmax(x, dim=axis)
def _gelu(x):
    return torch.nn.functional.gelu(x, approximate="tanh")
def _silu(x):
    return torch.nn.functional.silu(x)
def _sigmoid(x):
    return torch.sigmoid(x)
def _layernorm(x, axis=-1, eps=1e-5):
    m = x.mean(dim=axis, keepdim=True)
    v = x.var(dim=axis, keepdim=True, unbiased=False)
    return (x - m) / torch.sqrt(v + eps)
def _scatter_add(tgt, idx, src, axis=0):
    return tgt.clone().index_add_(axis, idx, src)
def _segment_sum(src, seg, n):
    out = torch.zeros((n,) + src.shape[1:], dtype=src.dtype)
    return out.index_add_(0, seg, src)
def _pad(x, pw):
    flat = tuple(v for pair in reversed(pw) for v in pair)
    return torch.nn.functional.pad(x, flat)

kernel_name = 'standalone__seq2seq_rnn_t_joint__speech'

def setup_inputs():

    _w = (lambda a: (lambda t: t.to(torch.bfloat16) if t.is_floating_point() else t)(torch.as_tensor(a)))
    B, T, D, K = 2, 4000, 144, 31
    U = 8
    sc = (1.0 / (K * D)) ** 0.5
    sd = (1.0 / D) ** 0.5
    return {
        "x": _w((lambda *s: torch.randn(*s, dtype=torch.bfloat16) * 0.2)(B, T, D) * 0.5),
        "w1": _w((lambda *s: torch.randn(*s, dtype=torch.bfloat16) * 3.2)(K, D, D) * sc),
        "w2": _w((lambda *s: torch.randn(*s, dtype=torch.bfloat16) * 3.2)(K, D, D) * sc),
        "g": _w((lambda *s: torch.randn(*s, dtype=torch.bfloat16) * 3.2)(B, U, D) * 0.5),
        "w_f": _w((lambda *s: torch.randn(*s, dtype=torch.bfloat16) * 3.2)(D, D) * sd),
        "w_g": _w((lambda *s: torch.randn(*s, dtype=torch.bfloat16) * 3.2)(D, D) * sd),
        "w_o": _w((lambda *s: torch.randn(*s, dtype=torch.bfloat16) * 3.2)(D, D) * sd),
    }

def reference(x, w1, w2, g, w_f, w_g, w_o):
    B, T, D = x.shape
    K = w1.shape[0]
    pad = K // 2
    xp = _pad(x, ((0,0),(pad,pad),(0,0)))
    h = torch.zeros_like(x)
    for i in range(K):
        h = h + torch.einsum("btc,cd->btd", xp[:, i:i+T, :], w1[i])
    h = _gelu(h)[:, ::2, :]
    T1 = h.shape[1]
    hp = _pad(h, ((0,0),(pad,pad),(0,0)))
    f = torch.zeros_like(h)
    for i in range(K):
        f = f + torch.einsum("btc,cd->btd", hp[:, i:i+T1, :], w2[i])
    f = _gelu(f)[:, ::2, :]
    fe = torch.einsum("btd,de->bte", f, w_f)
    ge = torch.einsum("bud,de->bue", g, w_g)
    j = torch.tanh(fe[:, :, None, :] + ge[:, None, :, :])
    return torch.einsum("btud,dv->btuv", j, w_o)
```

```python
import re

TRANS = ("v_exp_", "v_log_", "v_rcp_", "v_rsq_", "v_sqrt_", "v_sin_", "v_cos_")
REG = re.compile(r"^(-?)\|?([vas])(\d+)\|?$")
RNG = re.compile(r"^(-?)([vas])\[(\d+):(\d+)\]$")


def regs_of(tok):
    tok = tok.strip()
    m = REG.match(tok)
    if m:
        return [(m.group(2), int(m.group(3)))]
    m = RNG.match(tok)
    if m:
        return [(m.group(2), i) for i in range(int(m.group(3)), int(m.group(4)) + 1)]
    if tok == "vcc":
        return [("s", 106), ("s", 107)]
    if tok == "vcc_lo":
        return [("s", 106)]
    if tok == "m0":
        return [("s", 124)]
    if tok == "exec":
        return [("s", 126), ("s", 127)]
    return []


class Ins:
    __slots__ = ("text", "op", "dst", "src", "kind", "srcc", "wide", "states")

    def __init__(self, text):
        self.text = text
        body = text.split(";")[0].strip()
        parts = body.split(None, 1)
        self.op = op = parts[0]
        rest = parts[1] if len(parts) > 1 else ""
        toks = [t.strip() for t in rest.split(",")] if rest else []
        flags = ""
        if toks:
            last = toks[-1].split(None, 1)
            toks[-1] = last[0]
            flags = last[1] if len(last) > 1 else ""
            toks = [t.split(None, 1)[0] for t in toks]
        self.dst, self.src, self.srcc, self.wide = [], [], [], False
        self.states = 1
        R = [regs_of(t) for t in toks]
        flat = lambda L: [x for l in L for x in l]
        if op.startswith("v_mfma"):
            self.kind = "mfma"
            self.dst = R[0]
            self.src = R[1] + R[2]
            self.srcc = R[3]
        elif op.startswith("v_"):
            self.kind = "valu"
            if op.startswith("v_permlane") and "swap" in op:
                self.dst = R[0] + R[1]
                self.src = R[0] + R[1]
            else:
                self.dst = R[0]
                self.src = flat(R[1:])
                if op.startswith(("v_fmac", "v_mac")):
                    self.src += R[0]
                if op.startswith("v_cndmask") and len(toks) == 3:
                    self.src += regs_of("vcc")
        elif op.startswith(("buffer_load", "global_load")):
            if re.search(r"\blds\b", rest):
                self.kind = "dma"
                self.src = flat(R) + regs_of("m0")
            else:
                self.kind = "vload"
                self.dst = R[0]
                self.src = flat(R[1:])
        elif op.startswith(("buffer_store", "global_store", "buffer_atomic")):
            self.kind = "vstore"
            self.src = flat(R)
            if op.endswith(("x4", "x3")):
                self.wide = R[0] if op.startswith("buffer") else R[1]
        elif op.startswith("ds_read"):
            self.kind = "dsread"
            self.dst = R[0]
            self.src = flat(R[1:])
        elif op.startswith("ds_write"):
            self.kind = "dswrite"
            self.src = flat(R)
        elif op.startswith(("s_load", "s_memtime", "s_memrealtime")):
            self.kind = "smem"
            self.dst = R[0]
            self.src = flat(R[1:])
        elif op == "s_nop":
            self.kind = "nop"
            self.states = int(toks[0]) + 1
        elif op.startswith(("s_waitcnt", "s_barrier", "s_branch", "s_cbranch", "s_endpgm", "s_setprio", "s_cmp", "s_bitcmp")):
            self.kind = "salu"
            self.src = flat(R)
        elif op.startswith("s_"):
            self.kind = "salu"
            self.dst = R[0]
            self.src = flat(R[1:])
        else:
            raise ValueError("unknown op " + text)


def ov(a, b):
    return bool(set(a) & set(b))


def need(p, c):
    n = 0
    vmem = c.kind in ("vload", "vstore", "dma")
    mem = vmem or c.kind in ("dsread", "dswrite")
    if p.kind == "valu":
        pv = [r for r in p.dst if r[0] != "s"]
        ps = [r for r in p.dst if r[0] == "s"]
        if c.kind == "mfma" and ov(pv, c.src + c.srcc):
            n = max(n, 2)
        if c.kind == "valu":
            if p.op.startswith(TRANS) and ov(pv, c.src):
                n = max(n, 1)
            if c.op.startswith(("v_readfirstlane", "v_readlane")) and ov(pv, c.src):
                n = max(n, 1)
            if c.op.startswith("v_permlane") and ov(pv, c.src):
                n = max(n, 2)
            if ov(ps, c.src):
                n = max(n, 2)
        if vmem and ov(ps, c.src):
            n = max(n, 5)
        if c.kind in ("salu", "smem") and (ov(ps, c.src) or (c.op.startswith("s_cbranch_vcc") and ov(ps, regs_of("vcc")))):
            n = max(n, 1)
    if p.kind == "mfma":
        if c.kind == "mfma":
            if ov(p.dst, c.src):
                n = max(n, 8)
            if ov(p.dst, c.srcc) and (p.dst != c.srcc or p.op != c.op):
                n = max(n, 6)
            if ov(p.dst, c.dst) and p.dst != c.srcc:
                n = max(n, 6)
        elif c.kind == "valu" or mem:
            if ov(p.dst, c.src + c.dst):
                n = max(n, 8)
            if ov(p.srcc, c.dst):
                n = max(n, 3)
    if p.kind == "vstore" and p.wide and ov(p.wide, c.dst):
        n = max(n, 2)
    if p.kind == "salu" and c.kind == "dma" and ov(p.dst, regs_of("m0")):
        n = max(n, 1)
    return n


class Em:
    def __init__(self):
        self.L = []
        self.hist = []
        self.vm = []
        self.lg = []
        self.smem = []
        self.nid = 0
        self.nops = 0

    def raw(self, s):
        self.L.append(s)

    def comment(self, s):
        self.L.append("; " + s)

    def label(self, name):
        self.L.append(name + ":")

    def _push(self, ins):
        self.L.append("  " + ins.text)
        self.hist.append(ins)
        if len(self.hist) > 24:
            self.hist.pop(0)

    def wait(self, vm=None, lg=None):
        parts = []
        if vm is not None:
            vm = min(vm, 63)
            parts.append(f"vmcnt({vm})")
            if len(self.vm) > vm:
                self.vm = self.vm[len(self.vm) - vm:] if vm else []
        if lg is not None:
            lg = min(lg, 15)
            parts.append(f"lgkmcnt({lg})")
            if len(self.lg) > lg:
                self.lg = self.lg[len(self.lg) - lg:] if lg else []
            if lg == 0:
                self.smem = []
        self._push(Ins("s_waitcnt " + " ".join(parts)))

    def wait_tok(self, tok):
        for i, (t, _) in enumerate(self.vm):
            if t == tok:
                self.wait(vm=len(self.vm) - 1 - i)
                return

    def _auto_wait(self, ins):
        touched = set(ins.src + ins.dst + ins.srcc)
        vm = lg = None
        for i, (_, d) in enumerate(self.vm):
            if touched & set(d):
                vm = len(self.vm) - 1 - i
        for i, (_, d) in enumerate(self.lg):
            if touched & set(d):
                lg = len(self.lg) - 1 - i
        if lg is not None and self.smem:
            lg = 0
        if any(touched & set(d) for d in self.smem):
            lg = 0
        if vm is not None or lg is not None:
            self.wait(vm, lg)

    def forget(self):
        self.hist, self.vm, self.lg, self.smem = [], [], [], []

    def snapshot(self):
        return (list(self.hist), list(self.vm), list(self.lg), list(self.smem))

    def restore(self, s):
        self.hist, self.vm, self.lg, self.smem = (list(x) for x in s)

    def __call__(self, s):
        tok = None
        for line in s.split("\n"):
            line = line.strip()
            if not line:
                continue
            if line.endswith(":"):
                self.label(line[:-1])
                continue
            if line.startswith(";"):
                self.L.append(line)
                continue
            ins = Ins(line)
            assert ins.op != "s_waitcnt", "use .wait()"
            self._auto_wait(ins)
            dist, pad = 0, 0
            for p in reversed(self.hist):
                n = need(p, ins)
                if n > dist:
                    pad = max(pad, n - dist)
                dist += p.states
                if dist >= 8:
                    break
            if pad:
                self._push(Ins(f"s_nop {pad - 1}"))
                self.nops += pad
            self._push(ins)
            self.nid += 1
            tok = self.nid
            if ins.kind in ("vload", "vstore", "dma"):
                self.vm.append((tok, ins.dst))
                assert len(self.vm) <= 63, "vmcnt overflow"
            elif ins.kind in ("dsread", "dswrite"):
                self.lg.append((tok, ins.dst))
            elif ins.kind == "smem":
                self.smem.append(ins.dst)
        return tok

    def text(self):
        return "\n".join(self.L) + "\n"


def weave(e, mfmas, fillers, per=2):
    q = sorted(fillers, key=lambda f: f[0])
    qi = 0

    def run(it):
        if callable(it):
            it()
        else:
            e(it)

    while qi < len(q) and q[qi][0] < 0:
        run(q[qi][2])
        qi += 1
    for i, m in enumerate(mfmas):
        last = -1
        for k in range(qi, len(q)):
            if len(q[k]) > 3 and q[k][3] <= i:
                assert q[k][0] < i, (q[k], i)
                last = k
        while qi <= last:
            run(q[qi][2])
            qi += 1
        e(m)
        budget = per
        while qi < len(q) and q[qi][0] <= i and budget > 0:
            budget -= q[qi][1]
            run(q[qi][2])
            qi += 1
    while qi < len(q):
        run(q[qi][2])
        qi += 1
```

```python
import math
import struct
import sys
from emit import Em, weave

KN = "standalone__seq2seq_rnn_t_joint__speech_kernel"


def f32(x):
    return "0x%08x" % struct.unpack("<I", struct.pack("<f", x))[0]


def vr(b, n=4):
    return f"v[{b}:{b + n - 1}]" if n > 1 else f"v{b}"


def ar(b, n=4):
    return f"a[{b}:{b + n - 1}]" if n > 1 else f"a{b}"


WS_FW2 = 0x1000
WS_FCL = 0x10000
WS_GE = 0x20000
WS_W1 = 0x30000
WS_W2 = 0x180000
WS_P = 0x300000
WS_DBG = 0x1000000
PSTR = 24576
BIG = 0x80000000
L_X = 0
L_WF = 0
L_WO = 45056
L_RED = 110592
L_H = 155648
L_FS = L_RED + 20480
LDS_SIZE = 161792
SPIN = 20000

SX, SW1R, SWS, SWF, SWO, SOUT, SW2R = 24, 28, 32, 36, 40, 44, 48
sQ, sJ, sG, sB, sGi, sW, sN = 54, 55, 56, 57, 58, 59, 60
sT = 61
sW1, sW2, sP, sPc = 70, 71, 72, 73
sMask = 74
sSpin = 80
sGeO = 81
sStamp = 82
sC = 98
sIS = 100

(vT1o, vLane, vL16, vL16b, vChk, vXa0, vXa1, vXa2, vRedW, vRedR, vHw, vHr, vHr9, vN9W, vN9R, vRedL, vPst, vPst9,
 vT1, vT2, vPl, vPl4, vPl9, vPl9b, vFw, vFw9, vFr, vFr9, vOut, vOut9, vGe, vFlA, vFlC, vCs) = range(34)
vAI, vA9, vSent = 34, 38, 42
RING, NSLOT = 46, 24
WBUF = 142
WCHK = 202
VWF = 206
A_W2, A_ACC, A_WF = 0, 144, 144

C1 = 2.0 * math.sqrt(2.0 / math.pi) * math.log2(math.e)
C2 = C1 * 0.044715
S2 = 2.0 * math.log2(math.e)


def srd(i):
    return f"s[{i}:{i + 3}]"


class Gen:
    def __init__(self, stamps=False, nx=(27, 27, 27, 27), plpos=40, outflags=""):
        self.e = Em()
        self.stamps = stamps
        self.nx = nx
        self.plpos = plpos
        self.outflags = outflags
        self.stubs = []
        self.nst = 0

    def stamp(self):
        if self.stamps:
            i = sStamp + 2 * self.nst
            self.nst += 1
            assert self.nst <= 7
            self.e(f"s_memtime s[{i}:{i + 1}]")
            self.e.wait(lg=0)

    def mk_srd(self, d, base, size):
        self.e(f"s_mov_b32 s{d}, s{base}\ns_mov_b32 s{d + 1}, s{base + 1}\ns_mov_b32 s{d + 2}, {size}\ns_mov_b32 s{d + 3}, 0x20000")

    def gelu_pairs(self, pairs, tmp, scaled=False):
        e = self.e
        for x, t in zip(pairs, tmp):
            e(f"v_pk_mul_f32 {vr(t, 2)}, {vr(x, 2)}, {vr(x, 2)}")
        for x, t in zip(pairs, tmp):
            e(f"v_pk_fma_f32 {vr(t, 2)}, {vr(t, 2)}, s[{sC}:{sC + 1}], s[{sC}:{sC + 1}] op_sel:[0,0,1] op_sel_hi:[1,0,1]")
        for x, t in zip(pairs, tmp):
            e(f"v_pk_mul_f32 {vr(t, 2)}, {vr(t, 2)}, {vr(x, 2)}")
        for x, t in zip(pairs, tmp):
            e(f"v_exp_f32 v{t}, v{t}\nv_exp_f32 v{t + 1}, v{t + 1}")
        for x, t in zip(pairs, tmp):
            if scaled:
                e(f"v_pk_fma_f32 {vr(t, 2)}, {vr(t, 2)}, s[{sIS}:{sIS + 1}], s[{sIS}:{sIS + 1}]")
            else:
                e(f"v_pk_add_f32 {vr(t, 2)}, {vr(t, 2)}, 1.0 op_sel_hi:[1,0]")
        for x, t in zip(pairs, tmp):
            e(f"v_rcp_f32 v{t}, v{t}\nv_rcp_f32 v{t + 1}, v{t + 1}")
        for x, t in zip(pairs, tmp):
            e(f"v_pk_mul_f32 {vr(x, 2)}, {vr(x, 2)}, {vr(t, 2)}")

    def prologue(self):
        e = self.e
        e("s_cmp_ge_u32 s2, 256\ns_cbranch_scc1 L_exit")
        e("s_load_dwordx16 s[4:19], s[0:1], 0\ns_load_dwordx4 s[20:23], s[0:1], 64")
        if self.stamps:
            e(f"s_memrealtime s[{sStamp + 14}:{sStamp + 15}]")
        e("s_getpc_b64 s[52:53]")
        e.label("L_pc")
        e("v_lshlrev_b32 v1, 7, v0")
        e("v_min_u32 v1, L_codeend-L_pc-4, v1")
        e("global_load_dword v255, v1, s[52:53]")
        e(f"v_lshrrev_b32 v2, 6, v0\nv_and_b32 v{vLane}, 63, v0")
        e(f"v_readfirstlane_b32 s{sW}, v2")
        t = sT
        e(f"""
        s_and_b32 s{t}, s2, 1
        s_lshl_b32 s{t}, s{t}, 5
        s_lshr_b32 s{t + 1}, s2, 3
        s_add_u32 s{t}, s{t}, s{t + 1}
        s_bfe_u32 s{sQ}, s2, 0x20001
        s_mul_i32 s{sJ}, s{t}, 37
        s_lshr_b32 s{sJ}, s{sJ}, 8
        s_mul_i32 s{t + 1}, s{sJ}, 7
        s_sub_u32 s{t + 2}, s{t}, s{t + 1}
        s_mul_i32 s{sG}, s{sQ}, 7
        s_add_u32 s{sG}, s{sG}, s{t + 2}
        s_lshr_b32 s{sB}, s{sQ}, 1
        s_mul_i32 s{t + 1}, s{sB}, 14
        s_sub_u32 s{sGi}, s{sG}, s{t + 1}
        s_mul_i32 s{t + 3}, s{sB}, 1152000
        """)
        e(f"v_lshlrev_b32 v{vL16}, 4, v{vLane}")
        e(f"v_lshrrev_b32 v46, 1, v{vLane}\nv_and_b32 v47, 1, v{vLane}\nv_lshlrev_b32 v47, 4, v47")
        e.wait(lg=0)
        self.stamp()
        e(f"s_load_dword s{sN}, s[22:23], 0")
        self.mk_srd(SWS, 22, 0x10000000)
        e(f"s_cmp_eq_u32 s{sJ}, 9\ns_cbranch_scc1 L_spare")
        self.mk_srd(SW1R, 6, 1285632)
        self.mk_srd(SW2R, 8, 1285632)
        e(f"s_add_u32 s{SX}, s4, s{t + 3}\ns_addc_u32 s{SX + 1}, s5, 0\ns_mov_b32 s{SX + 2}, 1152000\ns_mov_b32 s{SX + 3}, 0x20000")
        e(f"s_cmp_eq_u32 s{sW}, 0\ns_cbranch_scc0 L_g1")
        e("v_mul_u32_u24 v48, 288, v46\nv_add_u32 v48, v48, v47")
        e(f"""
        s_lshl_b32 s{t + 3}, s{sQ}, 5
        s_add_u32 s{t + 4}, s{t + 3}, {160 - 288 * 16}
        s_mul_i32 s{t + 5}, s{sQ}, 1152
        s_add_u32 s{t + 5}, s{t + 5}, {128 - 288 * 31}
        s_mul_i32 s{t + 2}, s{t + 2}, 5
        s_lshl_b32 s{t + 6}, s{sJ}, 5
        s_mov_b32 m0, {L_RED}
        """)
        for i in range(5):
            e(f"""
            s_cmp_lt_u32 s{t + 2}, 31
            s_cselect_b32 s{t}, s{t + 4}, s{t + 5}
            s_cmp_lt_u32 s{t + 2}, 16
            s_cselect_b32 s{t}, s{t + 3}, s{t}
            s_mul_i32 s{t + 1}, s{t + 2}, 288
            s_add_u32 s{t}, s{t}, s{t + 1}
            s_mul_i32 s{t}, s{t}, 288
            s_add_u32 s{t}, s{t}, s{t + 6}
            buffer_load_dwordx4 v48, {srd(SW1R)}, s{t} offen lds
            """)
            if i < 4:
                e(f"s_add_u32 m0, m0, 1024\ns_add_u32 s{t + 2}, s{t + 2}, 1")
        e("s_branch L_g2")
        e.label("L_g1")
        e(f"s_cmp_eq_u32 s{sW}, 1\ns_cbranch_scc0 L_g2\ns_cmp_lt_u32 s{sG}, 24\ns_cbranch_scc0 L_g2")
        e(f"""
        v_and_b32 v48, 15, v46
        v_mul_u32_u24 v48, 288, v48
        v_lshrrev_b32 v49, 4, v46
        v_mul_u32_u24 v49, 41472, v49
        v_add3_u32 v48, v48, v49, v47
        s_mul_i32 s{t + 3}, s{sG}, 43
        s_lshr_b32 s{t + 3}, s{t + 3}, 8
        s_mul_i32 s{t + 2}, s{t + 3}, 6
        s_sub_u32 s{t + 2}, s{sG}, s{t + 2}
        s_mul_i32 s{t + 2}, s{t + 2}, 6
        s_mul_i32 s{t + 6}, s{sJ}, 4608
        s_mov_b32 m0, {L_RED + 5120}
        """)
        for i in range(6):
            e(f"""
            s_sub_u32 s{t}, s{t + 2}, 4
            s_lshr_b32 s{t}, s{t}, 1
            s_lshl_b32 s{t + 1}, s{t + 3}, 6
            s_add_u32 s{t + 1}, s{t + 1}, {32 * (i & 1)}
            s_lshl_b32 s{t + 4}, s{t + 3}, 2
            s_add_u32 s{t + 4}, s{t + 4}, s{t + 2}
            s_cmp_lt_u32 s{t + 2}, 4
            s_cselect_b32 s{t}, s{t + 4}, s{t}
            s_cselect_b32 s{t + 1}, 256, s{t + 1}
            s_mul_i32 s{t}, s{t}, 82944
            s_add_u32 s{t}, s{t}, s{t + 1}
            s_add_u32 s{t}, s{t}, s{t + 6}
            buffer_load_dwordx4 v48, {srd(SW2R)}, s{t} offen lds
            """)
            if i < 5:
                e(f"s_add_u32 m0, m0, 1024\ns_add_u32 s{t + 2}, s{t + 2}, 1")
        e.label("L_g2")
        e.forget()
        e.smem.append([("s", sN)])
        nx = self.nx
        assert sum(nx) == 108
        st = [sum(nx[:i]) * 1024 for i in range(5)]
        e(f"""
        s_mov_b32 s{t + 1}, {st[1]}
        s_cmp_eq_u32 s{sW}, 1
        s_cselect_b32 s{t}, {st[1]}, {st[0]}
        s_cselect_b32 s{t + 1}, {st[2]}, s{t + 1}
        s_cmp_eq_u32 s{sW}, 2
        s_cselect_b32 s{t}, {st[2]}, s{t}
        s_cselect_b32 s{t + 1}, {st[3]}, s{t + 1}
        s_cmp_eq_u32 s{sW}, 3
        s_cselect_b32 s{t}, {st[3]}, s{t}
        s_cselect_b32 s{t + 1}, {st[4]}, s{t + 1}
        s_mul_i32 s{t + 2}, s{sGi}, 82944
        s_sub_u32 s{t + 2}, s{t + 2}, 13056
        s_add_u32 s{t + 2}, s{t + 2}, s{t}
        s_mov_b32 m0, s{t}
        v_add_u32 v50, s{t + 2}, v{vL16}
        """)
        if min(nx) == 0:
            e(f"s_cmp_eq_u32 s{t}, s{t + 1}\ns_cbranch_scc1 L_xdone")
        e.label("L_xl")
        e(f"""
        buffer_load_dwordx4 v50, {srd(SX)}, 0 offen lds
        s_add_u32 m0, m0, 1024
        v_add_u32 v50, 1024, v50
        s_cmp_lt_u32 m0, s{t + 1}
        s_cbranch_scc1 L_xl
        """)
        e.label("L_xdone")
        e.vm = []

    def setup(self):
        e = self.e
        t = sT
        m, g, a, b, c = 46, 47, 48, 49, 50
        self.mk_srd(SWF, 12, 41472)
        self.mk_srd(SWO, 16, 41472)
        self.mk_srd(SOUT, 18, 4608000)
        e(f"""
        v_and_b32 v{m}, 15, v{vLane}
        v_lshrrev_b32 v{g}, 4, v{vLane}
        v_add_u32 v{vL16b}, 4096, v{vL16}
        v_lshlrev_b32 v{vChk}, 2, v{vLane}
        v_add_u32 v{vChk}, 5120, v{vChk}
        v_mul_u32_u24 v{a}, 6336, v{m}
        v_lshl_add_u32 v{a}, v{g}, 4, v{a}
        s_lshl_b32 s{t}, s{sW}, 6
        s_add_u32 s{t}, s{t}, {L_X + 96}
        v_add_u32 v{vXa0}, s{t}, v{a}
        v_add_u32 v{vXa1}, 320, v{vXa0}
        s_mul_i32 s{t}, s{sW}, 2304
        s_add_u32 s{t}, s{t}, {L_X + 96 + 256}
        v_add_u32 v{vXa2}, s{t}, v{a}
        v_add_u32 v{vRedL}, {L_RED}, v{vL16}
        s_mul_i32 s{t}, s{sW}, 11264
        v_add_u32 v{vRedW}, s{t}, v{vRedL}
        s_mul_i32 s{t + 1}, s{sW}, 3
        s_min_u32 s{t + 1}, s{t + 1}, 8
        s_lshl_b32 s{t}, s{t + 1}, 10
        v_add_u32 v{vRedR}, s{t}, v{vRedL}
        s_mul_i32 s{t}, s{sW}, 5120
        v_add_u32 v{vN9W}, s{t}, v{vRedL}
        s_lshl_b32 s{t}, s{sW}, 10
        v_add_u32 v{vN9R}, s{t}, v{vRedL}
        v_mul_u32_u24 v{a}, 11, v{m}
        v_add_u32 v{a}, s{t + 1}, v{a}
        v_lshlrev_b32 v{b}, 5, v{a}
        v_lshl_add_u32 v{b}, v{g}, 3, v{b}
        v_add_u32 v{vHw}, {L_H}, v{b}
        s_mul_i32 s{t}, s{sGi}, 144
        s_sub_u32 s{t}, s{t}, 15
        s_movk_i32 s{t + 2}, 2000
        v_add_u32 v{a}, s{t}, v{a}
        v_cmp_gt_u32_e64 s[{sMask}:{sMask + 1}], s{t + 2}, v{a}
        v_add_u32 v{a}, 1, v{a}
        v_cmp_gt_u32_e64 s[{sMask + 2}:{sMask + 3}], s{t + 2}, v{a}
        v_add_u32 v{a}, 1, v{a}
        v_cmp_gt_u32_e64 s[{sMask + 4}:{sMask + 5}], s{t + 2}, v{a}
        v_mul_u32_u24 v{a}, 320, v{m}
        v_lshl_add_u32 v{a}, v{g}, 4, v{a}
        v_add_u32 v{vHr}, {L_H}, v{a}
        s_lshl_b32 s{t}, s{sW}, 8
        v_add_u32 v{vHr9}, s{t}, v{vHr}
        v_lshlrev_b32 v{a}, 6, v{m}
        v_lshl_add_u32 v{vPst}, v{g}, 4, v{a}
        v_lshrrev_b32 v{vPst9}, 1, v{vPst}
        v_add_u32 v{vPst9}, 20480, v{vPst9}
        v_lshrrev_b32 v{a}, 2, v{vLane}
        v_mul_u32_u24 v{a}, 288, v{a}
        v_and_b32 v{b}, 3, v{vLane}
        v_lshl_add_u32 v{vT1}, v{b}, 3, v{a}
        v_add_u32 v{vT1o}, {L_WO}, v{vT1}
        v_lshl_add_u32 v{vT2}, v{b}, 3, v{vT1o}
        """)
        e(f"""
        s_mul_i32 s{t}, s{sJ}, 28
        s_mul_i32 s{t + 1}, s{sW}, 7
        s_add_u32 s{t}, s{t}, s{t + 1}
        s_mul_i32 s{sW1}, s{t}, 5376
        s_add_u32 s{sW1}, s{sW1}, {WS_W1}
        s_lshl_b32 s{t}, s{sJ}, 2
        s_add_u32 s{t + 8}, s{t}, s{sW}
        s_mul_i32 s{sW2}, s{t + 8}, 36864
        s_add_u32 s{sW2}, s{sW2}, {WS_W2}
        s_mul_i32 s{sPc}, s{sG}, {9 * PSTR}
        s_add_u32 s{sPc}, s{sPc}, {WS_P}
        s_mul_i32 s{sP}, s{sJ}, {PSTR}
        s_add_u32 s{sP}, s{sP}, s{sPc}
        s_mul_i32 s{sGeO}, s{sQ}, 4608
        s_add_u32 s{sGeO}, s{sGeO}, {WS_GE}
        s_mov_b32 s{sC}, {f32(-C2)}
        s_mov_b32 s{sC + 1}, {f32(-C1)}
        s_mov_b32 s{sIS}, {f32(1.0 / S2)}
        s_mov_b32 s{sIS + 1}, {f32(1.0 / S2)}
        """)
        e(f"""
        s_mul_i32 s{t}, s{t + 8}, 37
        s_lshr_b32 s{t}, s{t}, 8
        s_mul_i32 s{t + 1}, s{t}, 7
        s_sub_u32 s{t + 1}, s{t + 8}, s{t + 1}
        s_lshl_b32 s{t + 1}, s{t + 1}, 1
        s_cmp_eq_u32 s{t + 8}, 35
        s_cselect_b32 s{t}, 0, s{t}
        s_cselect_b32 s{t + 1}, 14, s{t + 1}
        s_cselect_b32 s{t + 2}, 512, 32
        s_cselect_b32 s{t + 3}, 1, 5
        s_lshl_b32 s{t + 4}, s{t}, 9
        s_lshl_b32 s{t + 5}, s{t + 1}, 5
        s_add_u32 s{t + 4}, s{t + 4}, s{t + 5}
        s_mul_i32 s{t + 5}, s{t + 1}, 5
        s_add_u32 s{t + 5}, s{t + 5}, s{t}
        s_mul_i32 s{t + 6}, s{sGi}, 72
        s_add_u32 s{t + 5}, s{t + 5}, s{t + 6}
        s_lshl_b32 s{t + 6}, s{t + 2}, 1
        s_lshl_b32 s{t + 7}, s{t + 4}, 1
        """)
        e(f"""
        v_lshrrev_b32 v{a}, 5, v{vLane}
        v_mul_u32_u24 v{a}, {PSTR}, v{a}
        v_bfe_u32 v{b}, v{vLane}, 3, 2
        v_mul_u32_u24 v{b}, 5120, v{b}
        v_add3_u32 v{a}, v{a}, v{b}, s{t + 7}
        v_bfe_u32 v{b}, v{vLane}, 2, 1
        v_mad_u32_u24 v{a}, v{b}, s{t + 6}, v{a}
        v_and_b32 v{c}, 3, v{vLane}
        v_lshl_add_u32 v{vPl}, v{c}, 4, v{a}
        v_mov_b32 v51, {BIG}
        v_cmp_gt_u32 vcc, 32, v{vLane}
        v_cndmask_b32 v{vPl4}, v51, v{vPl}, vcc
        v_mul_u32_u24 v{b}, 288, v{b}
        v_lshl_add_u32 v{b}, v{c}, 4, v{b}
        v_lshrrev_b32 v{a}, 5, v{vLane}
        v_lshl_add_u32 v{b}, v{a}, 7, v{b}
        v_bfe_u32 v{a}, v{vLane}, 4, 1
        v_lshl_add_u32 v{b}, v{a}, 3, v{b}
        v_bfe_u32 v52, v{vLane}, 3, 1
        v_lshl_add_u32 v{b}, v52, 6, v{b}
        s_mul_i32 s{t}, s{sW}, 640
        s_add_u32 s{t}, s{t}, {L_FS}
        v_add_u32 v{vFw}, s{t}, v{b}
        v_and_b32 v53, 7, v{vLane}
        v_mul_u32_u24 v{a}, {PSTR}, v{g}
        v_mad_u32_u24 v{a}, v52, s{t + 2}, v{a}
        v_lshl_add_u32 v{a}, v53, 2, v{a}
        s_add_u32 s{t + 4}, s{t + 4}, 20480
        v_add_u32 v{vPl9}, s{t + 4}, v{a}
        v_cmp_gt_u32_e64 s[{t + 7}:{t + 8}], 16, v{vLane}
        v_mul_u32_u24 v{a}, 288, v52
        v_add_u32 v{a}, s{t}, v{a}
        v_cndmask_b32_e64 v{vPl9b}, v51, v{vPl9}, s[{t + 7}:{t + 8}]
        v_lshl_add_u32 v{vFr}, v{g}, 4, v{a}
        v_add_u32 v{a}, 256, v{a}
        v_lshl_add_u32 v{vFr9}, v{g}, 3, v{a}
        v_lshl_add_u32 v{a}, v53, 2, v{a}
        v_lshl_add_u32 v{a}, v{g}, 1, v{a}
        s_add_u32 s{t}, s{t}, 512
        v_lshl_add_u32 v{b}, v{vLane}, 1, s{t}
        v_cndmask_b32 v{vFw9}, v{b}, v{a}, vcc
        v_mul_u32_u24 v{a}, 576, v53
        v_lshl_add_u32 v{vGe}, v{g}, 4, v{a}
        v_mov_b32 v{a}, s{t + 5}
        v_mad_u32_u24 v{a}, v52, s{t + 3}, v{a}
        v_cmp_gt_u32 vcc, 1000, v{a}
        s_mul_i32 s{t}, s{sB}, 1000
        v_add_u32 v{a}, s{t}, v{a}
        v_lshl_add_u32 v{a}, v{a}, 3, v53
        v_mul_u32_u24 v{a}, 288, v{a}
        v_cndmask_b32 v{a}, v51, v{a}, vcc
        v_lshl_add_u32 v{vOut}, v{g}, 4, v{a}
        v_add_u32 v{a}, 256, v{a}
        v_lshl_add_u32 v{vOut9}, v{g}, 3, v{a}
        """)
        e(f"""
        s_mul_i32 s{t}, s{sJ}, 24
        s_mul_i32 s{t + 1}, s{sW}, 6
        s_add_u32 s{t}, s{t}, s{t + 1}
        s_add_u32 s{t}, s{t}, {WS_FW2 // 128}
        v_min_u32 v{a}, 5, v{vLane}
        v_add_lshl_u32 v{vFlA}, v{a}, s{t}, 7
        s_mul_i32 s{t}, s{sG}, 9
        v_add_u32 v{a}, s{t}, v{vLane}
        v_add_u32 v{b}, 243, v{vLane}
        v_min_u32 v{b}, 255, v{b}
        v_cmp_gt_u32 vcc, 9, v{vLane}
        s_movk_i32 s{t}, {WS_FCL // 128}
        v_cndmask_b32 v{a}, v{b}, v{a}, vcc
        v_add_lshl_u32 v{vFlC}, v{a}, s{t}, 7
        """)
        e(f"""
        v_and_b32 v{a}, 1, v{g}
        v_lshlrev_b32 v{a}, 3, v{a}
        v_sub_u32 v{a}, v{m}, v{a}
        v_and_b32 v{b}, 1, v{a}
        v_lshlrev_b32 v{b}, 4, v{b}
        v_mov_b32 v{c}, 0x3f80
        v_lshlrev_b32 v{b}, v{b}, v{c}
        v_lshrrev_b32 v{a}, 1, v{a}
        """)
        for q in range(4):
            e(f"v_cmp_eq_u32 vcc, {q}, v{a}\nv_mov_b32 v{vSent + q}, -1\nv_cndmask_b32 v{vAI + q}, 0, v{b}, vcc")
        e(f"""
        v_cmp_eq_u32 vcc, 0, v{m}
        v_lshlrev_b32 v{b}, 16, v{c}
        v_cndmask_b32 v{vA9}, 0, v{c}, vcc
        v_cmp_eq_u32 vcc, 4, v{m}
        v_cndmask_b32 v{vA9}, v{vA9}, v{b}, vcc
        v_mov_b32 v{vA9 + 1}, v{vA9}
        v_mov_b32 v{vA9 + 2}, v{vA9}
        v_mov_b32 v{vA9 + 3}, v{vA9}
        """)
        e(f"v_lshlrev_b32 v{a}, 8, v{g}\nv_lshl_add_u32 v{a}, v{m}, 3, v{a}\nv_add_u32 v54, {L_RED}, v{a}")
        e(f"s_mul_i32 s{sN}, s{sN}, 1664525\ns_add_u32 s{sN}, s{sN}, 1013904223")

    def checksum(self, base):
        L = []
        for i in range(10):
            prev = f"s{sN}" if i == 0 else f"v{vCs}"
            L.append(f"v_add3_u32 v{vCs}, v{base + 2 * i}, v{base + 2 * i + 1}, {prev}")
        return L

    def produce(self):
        e = self.e
        t = sT
        R = 56
        e(f"s_cmp_eq_u32 s{sW}, 0\ns_cbranch_scc0 L_p1")
        e(f"s_mul_i32 s{t}, s{sJ}, 28\ns_add_u32 s{t}, s{t}, s{sG}\ns_mul_i32 s{t}, s{t}, 5376\ns_add_u32 s{t}, s{t}, {WS_W1}")
        e.wait(vm=self.nx[0])
        for i in range(5):
            for h in range(2):
                e(f"ds_read_b64_tr_b16 {vr(R + 4 * i + 2 * h, 2)}, v54 offset:{1024 * i + 128 * h}")
        cs = self.checksum(R)
        for i in range(5):
            a, o = (vL16, 1024 * i) if i < 4 else (vL16b, 0)
            e(f"buffer_store_dwordx4 {vr(R + 4 * i)}, v{a}, {srd(SWS)}, s{t} offen offset:{o} sc1")
            e(cs[2 * i])
            e(cs[2 * i + 1])
        e(f"buffer_store_dword v{vCs}, v{vChk}, {srd(SWS)}, s{t} offen sc1")
        e("s_branch L_p2")
        e.label("L_p1")
        e.forget()
        e(f"s_cmp_eq_u32 s{sW}, 1\ns_cbranch_scc0 L_p2\ns_cmp_lt_u32 s{sG}, 24\ns_cbranch_scc0 L_p2")
        e(f"""
        s_mul_i32 s{t}, s{sJ}, 24
        s_add_u32 s{t + 1}, s{t}, s{sG}
        s_mul_i32 s{t}, s{t + 1}, 6144
        s_add_u32 s{t}, s{t}, {WS_W2}
        s_lshl_b32 s{t + 1}, s{t + 1}, 7
        s_add_u32 s{t + 1}, s{t + 1}, {WS_FW2}
        v_mov_b32 v55, s{sN}
        """)
        e.wait(vm=self.nx[1])
        for i in range(6):
            for h in range(2):
                e(f"ds_read_b64_tr_b16 {vr(R + 4 * i + 2 * h, 2)}, v54 offset:{5120 + 1024 * i + 128 * h}")
        for i in range(6):
            a, o = (vL16, 1024 * i) if i < 4 else (vL16b, 1024 * (i - 4))
            e(f"buffer_store_dwordx4 {vr(R + 4 * i)}, v{a}, {srd(SWS)}, s{t} offen offset:{o} sc1")
        e.wait(vm=0)
        e("s_mov_b64 exec, 1")
        e(f"buffer_store_dword v55, off, {srd(SWS)}, s{t + 1} sc1")
        e("s_mov_b64 exec, -1")
        e.label("L_p2")
        e.forget()

    def w1_loads(self, c, soff):
        b = WBUF + 20 * (c % 3)
        L = []
        for i in range(5):
            a, o = (vL16, 1024 * i) if i < 4 else (vL16b, 0)
            L.append(f"buffer_load_dwordx4 {vr(b + 4 * i)}, v{a}, {srd(SWS)}, s{soff} offen offset:{o} sc1")
        L.append(f"buffer_load_dword v{WCHK + c % 3}, v{vChk}, {srd(SWS)}, s{soff} offen sc1")
        return L

    def add_stub(self, name, body):
        self.stubs.append((name, body))

    def w1_check(self, c):
        e = self.e
        e(f"v_cmp_ne_u32 vcc, v{vCs}, v{WCHK + c % 3}")
        e(f"s_cbranch_vccnz L_r1_{c}")
        e.label(f"L_r1_{c}_back")

        def body():
            e(f"s_add_u32 s{sT + 8}, s{sW1}, {5376 * c}")
            for l in self.w1_loads(c, sT + 8):
                e(l)
            e.wait(vm=0)
            for l in self.checksum(WBUF + 20 * (c % 3)):
                e(l)
            e(f"v_cmp_ne_u32 vcc, v{vCs}, v{WCHK + c % 3}")
        self.add_stub(f"L_r1_{c}", body)

    def flag_check(self, name, vaddr, vdata):
        e = self.e
        e(f"v_cmp_ne_u32 vcc, s{sN}, v{vdata}")
        e(f"s_cbranch_vccnz {name}")
        e.label(f"{name}_back")

        def body():
            e(f"buffer_load_dword v{vdata}, v{vaddr}, {srd(SWS)}, 0 offen sc1")
            e.wait(vm=0)
            e(f"v_cmp_ne_u32 vcc, s{sN}, v{vdata}")
        self.add_stub(name, body)

    def conv1(self):
        e = self.e
        t = sT
        e.wait(vm=0)
        self.stamp()
        e(f"s_add_u32 s{t}, s{sW1}, 5376")
        for l in self.w1_loads(0, sW1) + self.w1_loads(1, t):
            e(l)
        e("s_barrier")
        seq = [(s, r) for s in range(31) for r in range(11)]
        seq += [(s, r) for r in range(11) for s in range(31, 35)]

        def frag(s, r):
            if s < 16:
                return (0, r + s)
            if s < 31:
                return (1, r + s - 16)
            return (2, r + s - 31)
        first, last = {}, {}
        for i, (s, r) in enumerate(seq):
            f = frag(s, r)
            first.setdefault(f, i)
            last[f] = i
        order = sorted(first, key=lambda f: first[f])
        free = [(-1, k) for k in range(NSLOT)]
        slot = {}
        fill = []
        LEAD = 26
        for n, f in enumerate(order):
            free.sort()
            avail, k = free.pop(0)
            slot[f] = k
            free.append((last[f], k))
            pos = max(avail, first[f] - LEAD)
            if f[0] > 0 and f[1] <= 10:
                pos = max(avail, first[(f[0], 0)] - 70 + 5 * f[1])
            if n < 13:
                pos = -1
            fill.append((pos, 1, f"ds_read_b128 {vr(RING + 4 * k)}, v{vXa0 + f[0]} offset:{576 * f[1]}", first[f]))
        for l in self.checksum(WBUF):
            fill.append((-1, 1, l))
        fill.append((-1, 1, lambda: self.w1_check(0)))
        fill.append((-1, 1, self.stamp))
        self.clr_tok = None
        for c in range(7):
            base = 55 * c
            if c + 2 < 7:
                fill.append((base, 0, f"s_add_u32 s{t}, s{sW1}, {5376 * (c + 2)}"))
                for k, l in enumerate(self.w1_loads(c + 2, t)):
                    fill.append((base + 2 * k, 1, l))
            if c < 6:
                def clr(c=c):
                    a, o = (vL16, 1024 * c) if c < 4 else (vL16b, 1024 * (c - 4))
                    self.clr_tok = e(f"buffer_store_dwordx4 {vr(vSent)}, v{a}, {srd(SWS)}, s{t + 1} offen offset:{o} sc1")
                if c == 0:
                    fill.append((base + 12, 0, f"s_mul_i32 s{t + 1}, s{sW}, 6144\ns_add_u32 s{t + 1}, s{t + 1}, s{sP}"))
                fill.append((base + 13, 1, clr))
                for k, l in enumerate(self.checksum(WBUF + 20 * ((c + 1) % 3))):
                    fill.append((base + 40 + k, 1, l))
                fill.append((base + 52, 1, (lambda c=c: self.w1_check(c + 1)), base + 55))
        fill.append((20, 1, f"buffer_load_dword v205, v{vFlA}, {srd(SWS)}, 0 offen sc1"))
        fill.append((68, 1, lambda: self.flag_check("L_r2", vFlA, 205)))
        pos = 70
        for p in range(36):
            if p % 4 == 0:
                fill.append((pos, 0, f"s_add_u32 s{t + 2}, s{sW2}, {1024 * p}"))
            fill.append((pos, 1, f"buffer_load_dwordx4 {ar(A_W2 + 4 * p)}, v{vL16}, {srd(SWS)}, s{t + 2} offen offset:{1024 * (p % 4)} sc1"))
            pos += 7
        for r in range(11):
            fill.append((341 + 4 * r + 3 + 5, 1, f"ds_write_b128 v{vRedW}, {ar(A_ACC + 4 * r)} offset:{1024 * r}"))
        mf = []
        for s, r in seq:
            w = WBUF + 20 * ((s // 5) % 3) + 4 * (s % 5)
            acc = ar(A_ACC + 4 * r)
            mf.append(f"v_mfma_f32_16x16x32_bf16 {acc}, {vr(w)}, {vr(RING + 4 * slot[frag(s, r)])}, {acc if s else '0'}")
        weave(e, mf, fill)

    def dma_w(self, s, ldsbase):
        t = sT
        L = []
        for k in range(11):
            pre = ""
            if k % 4 == 0:
                pre = f"s_add_u32 s{t + 4}, s{t + 3}, {1024 * k}\ns_add_u32 m0, s{t + 3}, {ldsbase + 1024 * k}\n"
            L.append(pre + f"buffer_load_dwordx4 v{vL16}, {srd(s)}, s{t + 4} offen offset:{1024 * (k % 4)} lds")
        return L

    def transition(self):
        e = self.e
        t = sT
        e.wait_tok(self.clr_tok)
        e.wait(lg=0)
        e("s_barrier")
        self.stamp()
        R = RING
        for k in range(3):
            for s in range(4):
                e(f"ds_read_b128 {vr(R + 16 * k + 4 * s)}, v{vRedR} offset:{11264 * s + 1024 * k}")
        e(f"""
        s_mul_i32 s{t}, s{sG}, 9
        s_add_u32 s{t}, s{t}, s{sJ}
        s_lshl_b32 s{t}, s{t}, 7
        s_add_u32 s{t}, s{t}, {WS_FCL}
        s_mul_i32 s{t + 3}, s{sW}, 11264
        v_mov_b32 v{vCs}, s{sN}
        s_cmp_eq_u32 s{sW}, 0
        s_cbranch_scc0 L_nf
        s_mov_b64 exec, 1
        """)
        e(f"buffer_store_dword v{vCs}, off, {srd(SWS)}, s{t} sc1")
        e.vm.pop()
        e("s_mov_b64 exec, -1")
        e.label("L_nf")
        for l in self.dma_w(SWF, L_WF):
            self.wf_tok = e(l)
        for k in range(3):
            b = R + 16 * k
            for h in (0, 2):
                e(f"v_pk_add_f32 {vr(b + h, 2)}, {vr(b + h, 2)}, {vr(b + 4 + h, 2)}")
                e(f"v_pk_add_f32 {vr(b + 8 + h, 2)}, {vr(b + 8 + h, 2)}, {vr(b + 12 + h, 2)}")
            for h in (0, 2):
                e(f"v_pk_add_f32 {vr(b + h, 2)}, {vr(b + h, 2)}, {vr(b + 8 + h, 2)}")
        pairs = [R + 16 * k + h for k in range(3) for h in (0, 2)]
        self.gelu_pairs(pairs, [p + 4 for p in pairs])
        for k in range(3):
            b = R + 16 * k
            e(f"v_cvt_pk_bf16_f32 v{b}, v{b}, v{b + 1}\nv_cvt_pk_bf16_f32 v{b + 1}, v{b + 2}, v{b + 3}")
            e(f"v_cndmask_b32_e64 v{b}, 0, v{b}, s[{sMask + 2 * k}:{sMask + 2 * k + 1}]")
            e(f"v_cndmask_b32_e64 v{b + 1}, 0, v{b + 1}, s[{sMask + 2 * k}:{sMask + 2 * k + 1}]")
            e(f"ds_write_b64 v{vHw}, {vr(b, 2)} offset:{32 * k}")
        e.wait(lg=0)
        e("s_barrier")

    def wf_reg(self, eps, s):
        if s < 4:
            i = 4 * (4 * eps + s)
            return ("a", A_WF + i) if i < 112 else ("v", VWF + i - 112)
        return ("v", VWF + 32 + 2 * eps)

    def wo_reg(self, tile, s):
        if s < 4:
            return ("a", 4 * (9 * s + tile))
        return ("v", 46 + 2 * tile)

    @staticmethod
    def rr(fb, off, n):
        return f"{fb[0]}[{fb[1] + off}:{fb[1] + off + n - 1}]"

    def conv2(self):
        e = self.e
        t = sT
        BM, B9, ACC9, TMP, ACC, Z = 46, 126, 162, 182, 190, 126
        mf, fill = [], []
        for k in range(4):
            for r in range(5):
                acc = vr(ACC9 + 4 * r)
                mf.append(f"v_mfma_f32_16x16x32_bf16 {acc}, {ar(A_W2 + 4 * k)}, {vr(B9 + 4 * (r + k))}, {acc if k else '0'}")
        for r in range(5):
            for k in range(16):
                for ab in range(2):
                    acc = vr(ACC + 8 * (r & 1) + 4 * ab)
                    mf.append(f"v_mfma_f32_16x16x32_bf16 {acc}, {ar(A_W2 + 16 + 8 * k + 4 * ab)}, {vr(BM + 4 * (r + k))}, {acc if k else '0'}")
        for i in range(8):
            fill.append((-1, 1, f"ds_read_b128 {vr(B9 + 4 * i)}, v{vHr9} offset:{64 * i}"))
        for i in range(20):
            dl = 20 + 2 * i if i < 16 else 20 + 32 * (i - 15) + 30
            fill.append((i, 1, f"ds_read_b128 {vr(BM + 4 * i)}, v{vHr} offset:{64 * i}", dl))
        for r in range(5):
            fill.append((23 + r, 1, f"ds_write_b128 v{vN9W}, {vr(ACC9 + 4 * r)} offset:{1024 * r}"))

        def wo(l):
            self.wo_tok = e(l)
        for k, l in enumerate(self.dma_w(SWO, L_WO)):
            fill.append((28 + 2 * k, 1, (lambda l=l: wo(l))))
        fill.append((50, 0, f"s_mul_i32 s{t}, s{sW}, 5120\ns_add_u32 s{t}, s{t}, s{sP}\ns_add_u32 s{t + 1}, s{t}, 4096"))
        fill.append((50, 0, f"s_lshl_b32 s{t + 2}, s{sW}, 9\ns_add_u32 s{t + 2}, s{t + 2}, s{sP}"))
        for r in range(5):
            end = 20 + 32 * r + 31
            a = ACC + 8 * (r & 1)
            d = TMP + 4 * (r & 1)
            for q in range(4):
                fill.append((end + 4 + q // 2, 1, f"v_cvt_pk_bf16_f32 v{d + q}, v{a + 2 * q}, v{a + 2 * q + 1}", end + 30))
            so, o = (t, 1024 * r) if r < 4 else (t + 1, 0)
            fill.append((end + 6, 1, f"buffer_store_dwordx4 {vr(d)}, v{vPst}, {srd(SWS)}, s{so} offen offset:{o} sc1", end + 30))
        PB = 66

        def bar4():
            e.wait_tok(self.wf_tok)
            e.wait(lg=0)
            e("s_barrier")
        fill.append((PB, 2, bar4))
        for s in range(4):
            fill.append((PB + 1, 1, f"ds_read_b128 {vr(B9 + 4 * s)}, v{vN9R} offset:{5120 * s}"))
        for s in range(4):
            fill.append((PB + 1, 1, f"ds_read_b128 {vr(B9 + 16 + 4 * s)}, v{vRedL} offset:{5120 * s + 4096}"))
        fill.append((PB + 2, 1, f"buffer_load_dword v{vCs}, v{vFlC}, {srd(SWS)}, 0 offen sc1"))
        p = PB + 14
        for hb in (B9, B9 + 16):
            for q in range(4):
                fill.append((p, 1, f"v_add_f32 v{hb + q}, v{hb + q}, v{hb + 4 + q}"))
                fill.append((p, 1, f"v_add_f32 v{hb + 8 + q}, v{hb + 8 + q}, v{hb + 12 + q}"))
            for q in range(4):
                fill.append((p, 1, f"v_add_f32 v{hb + q}, v{hb + q}, v{hb + 8 + q}"))
            fill.append((p, 1, f"v_cvt_pk_bf16_f32 v{hb}, v{hb}, v{hb + 1}"))
            fill.append((p, 1, f"v_cvt_pk_bf16_f32 v{hb + 1}, v{hb + 2}, v{hb + 3}"))
        fill.append((p, 1, f"buffer_store_dwordx2 {vr(B9, 2)}, v{vPst9}, {srd(SWS)}, s{t + 2} offen sc1"))

        def st4():
            e(f"s_cmp_eq_u32 s{sW}, 0\ns_cbranch_scc0 L_n4")
            e(f"buffer_store_dwordx2 {vr(B9 + 16, 2)}, v{vPst9}, {srd(SWS)}, s{sP} offen offset:2048 sc1")
            e.vm.pop()
            e.label("L_n4")
        fill.append((p, 1, st4))
        p = PB + 5
        n = 0
        for eps in range(9):
            for s in range(5):
                fb = self.wf_reg(eps, s)
                for h in range(2 if s < 4 else 1):
                    fill.append((p + n, 1, f"ds_read_b64_tr_b16 {self.rr(fb, 2 * h, 2)}, v{vT1} offset:{L_WF + (32 * s + 16 * h) * 288 + 32 * eps}"))
                    n += 1
        fill.append((128, 1, lambda: self.flag_check("L_r3", vFlC, vCs)))
        for eps in range(9):
            fill.append((130 + eps, 1, f"buffer_load_dwordx4 {vr(Z + 4 * eps)}, v{vGe}, {srd(SWS)}, s{sGeO} offen offset:{64 * eps} sc1"))
        for q in range(4):
            fill.append((140, 1, f"v_mov_b32 v{vSent + q}, 0x3f803f80"))
        weave(e, mf, fill)

    def joint(self):
        e = self.e
        t = sT
        Z, PL, D, FB, TM, JP, OA, OP = 126, 64, 88, 96, 114, 64, 170, 96
        self.stamp()
        e.wait_tok(self.wo_tok)
        e("s_barrier")

        def ploads():
            for L in range(5):
                e(f"s_add_u32 s{t}, s{sPc}, {2 * PSTR * L}")
                e(f"buffer_load_dwordx4 {vr(PL + 4 * L)}, v{vPl if L < 4 else vPl4}, {srd(SWS)}, s{t} offen sc1")
            for N in range(3):
                e(f"s_add_u32 s{t}, s{sPc}, {4 * PSTR * N}")
                e(f"buffer_load_dword v{PL + 20 + N}, v{vPl9 if N < 2 else vPl9b}, {srd(SWS)}, s{t} offen sc1")

        def pcheck():
            e(f"v_max3_u32 v{vCs}, v{PL}, v{PL + 1}, v{PL + 2}")
            for i in range(10):
                e(f"v_max3_u32 v{vCs}, v{vCs}, v{PL + 3 + 2 * i}, v{PL + 4 + 2 * i}")
            e(f"v_cmp_eq_u32 vcc, -1, v{vCs}")
        e(f"v_mov_b32 v{PL + 23}, 0")
        reads, mf = [], []
        for s in range(5):
            for tile in range(9):
                fb = self.wo_reg(tile, s)
                for h in range(2 if s < 4 else 1):
                    row = (32 * s + 16 * h) * 288
                    if tile < 8:
                        reads.append(f"ds_read_b64_tr_b16 {self.rr(fb, 2 * h, 2)}, v{vT2} offset:{row + 64 * (tile >> 1) + 8 * (tile & 1)}")
                    else:
                        reads.append(f"ds_read_b64_tr_b16 {self.rr(fb, 2 * h, 2)}, v{vT1o} offset:{row + 256}")
                acc = vr(OA + 4 * tile)
                if s < 4:
                    mf.append((len(reads), f"v_mfma_f32_16x16x32_bf16 {acc}, {self.rr(fb, 0, 4)}, {vr(vSent)}, {acc if s else '0'}"))
                else:
                    mf.append((len(reads), f"v_mfma_f32_16x16x16_bf16 {acc}, {self.rr(fb, 0, 2)}, {vr(vSent, 2)}, {acc}"))
        mi = 0
        for i, l in enumerate(reads):
            if i == self.plpos:
                e.wait(vm=0)
                ploads()
            e(l)
            while mi < len(mf) and mf[mi][0] + 12 <= i + 1:
                e(mf[mi][1])
                mi += 1
        while mi < len(mf):
            e(mf[mi][1])
            mi += 1
        pcheck()
        e("s_cbranch_vccnz L_r4")
        e.label("L_r4_back")

        def body():
            ploads()
            e.wait(vm=0)
            pcheck()
        self.add_stub("L_r4", body)
        self.stamp()
        e(f"v_mfma_f32_16x16x32_bf16 {vr(D + 4)}, {vr(vA9)}, {vr(PL + 20)}, 0")
        for L in range(5):
            e(f"v_mfma_f32_16x16x32_bf16 {vr(D)}, {vr(vAI)}, {vr(PL + 4 * L)}, {vr(D) if L else '0'}")
        e(f"s_or_b32 s{t}, s{sG}, s{sJ}\ns_or_b32 s{t}, s{t}, s{sW}\ns_cmp_eq_u32 s{t}, 0\ns_cbranch_scc0 L_ne")
        snap = e.snapshot()
        e(f"v_mov_b32 v{vCs}, s{sN}\ns_mov_b64 exec, 1")
        e(f"buffer_store_dword v{vCs}, off, {srd(SWS)}, 0 sc1")
        e("s_mov_b64 exec, -1")
        e.label("L_ne")
        e.restore(snap)
        self.gelu_pairs([D + 4, D, D + 2], [TM, TM + 2, TM + 4], scaled=True)
        e(f"v_cvt_pk_bf16_f32 v{D + 4}, v{D + 4}, v{D + 4}")
        e(f"v_cvt_pk_bf16_f32 v{D}, v{D}, v{D + 1}\nv_cvt_pk_bf16_f32 v{D + 1}, v{D + 2}, v{D + 3}")
        e(f"ds_write_b16 v{vFw9}, v{D + 4}\nds_write_b64 v{vFw}, {vr(D, 2)}")
        e(f"ds_read_b64 {vr(FB + 16, 2)}, v{vFr9}")
        for s in range(4):
            e(f"ds_read_b128 {vr(FB + 4 * s)}, v{vFr} offset:{64 * s}")
        M = []
        V = []
        zend = {}
        tend = {}
        n = 0
        for eps in range(9):
            n += 14
            tend[eps] = n
        order = ["H0", "H1", "H2", "H3", "H4", "H5", "Z0", "Z1", "Z2", "H6", "H7", "H8", "Z3", "Z4", "O0", "Z5", "Z6", "O1",
                 "Z7", "Z8", "O2", "O3", "O4"]
        oend = {}
        for it in order:
            k = int(it[1])
            if it[0] == "H":
                acc = vr(Z + 4 * k)
                M.append((f"v_mfma_f32_16x16x16_bf16 {acc}, {self.rr(self.wf_reg(k, 4), 0, 2)}, {vr(FB + 16, 2)}, {acc}", 0))
            elif it[0] == "Z":
                acc = vr(Z + 4 * k)
                for s in range(4):
                    fb = self.wf_reg(k, s)
                    M.append((f"v_mfma_f32_16x16x32_bf16 {acc}, {self.rr(fb, 0, 4)}, {vr(FB + 4 * s)}, {acc}", 0))
                zend[k] = len(M)
            else:
                for tile in range(9):
                    fb = self.wo_reg(tile, k)
                    acc = vr(OA + 4 * tile)
                    if k < 4:
                        M.append((f"v_mfma_f32_16x16x32_bf16 {acc}, {self.rr(fb, 0, 4)}, {vr(JP + 4 * k)}, {acc}", tend[2 * k + 1]))
                    else:
                        M.append((f"v_mfma_f32_16x16x16_bf16 {acc}, {self.rr(fb, 0, 2)}, {vr(JP + 16, 2)}, {acc}", tend[8]))
                    oend[tile] = len(M)
        for eps in range(9):
            z = Z + 4 * eps
            for q in range(4):
                V.append((f"v_exp_f32 v{z + q}, v{z + q}", 2, zend[eps] + (5 if eps == 0 else 3)))
            for q in range(4):
                V.append((f"v_fma_f32 v{z + q}, v{z + q}, -0.5, -0.5", 1, 0))
            for q in range(4):
                V.append((f"v_rcp_f32 v{z + q}, v{z + q}", 2, 0))
            V.append((f"v_cvt_pk_bf16_f32 v{JP + 2 * eps}, v{z}, v{z + 1}", 1, 0))
            V.append((f"v_cvt_pk_bf16_f32 v{JP + 2 * eps + 1}, v{z + 2}, v{z + 3}", 1, 0))
        fl = self.outflags
        for p in range(5):
            tiles = (2 * p, 2 * p + 1) if p < 4 else (8,)
            for i, tile in enumerate(tiles):
                a = OA + 4 * tile
                rdy = min(oend[tile] + 4, len(M))
                V.append((f"v_cvt_pk_bf16_f32 v{OP + 4 * p + 2 * i}, v{a}, v{a + 1}", 1, rdy))
                V.append((f"v_cvt_pk_bf16_f32 v{OP + 4 * p + 2 * i + 1}, v{a + 2}, v{a + 3}", 1, rdy))
            if p < 4:
                V.append((f"buffer_store_dwordx4 {vr(OP + 4 * p)}, v{vOut}, {srd(SOUT)}, 0 offen offset:{64 * p} {fl}", 1, 0))
            else:
                V.append((f"buffer_store_dwordx2 {vr(OP + 16, 2)}, v{vOut9}, {srd(SOUT)}, 0 offen {fl}", 1, 0))
        mi = vi = 0
        credit = 0.0
        while mi < len(M) or vi < len(V):
            m_ok = mi < len(M) and M[mi][1] <= vi
            v_ok = vi < len(V) and V[vi][2] <= mi
            if m_ok and (credit <= 0 or not v_ok):
                e(M[mi][0])
                mi += 1
                credit = min(credit, 0) + 2.7
            else:
                assert v_ok, (mi, vi)
                e(V[vi][0])
                credit -= V[vi][1]
                vi += 1

    def epilogue(self):
        e = self.e
        if self.stamps:
            self.stamp()
            e.wait(vm=0)
            e("s_memrealtime s[62:63]")
            for i in range(8):
                e(f"v_mov_b32 v{46 + i}, s{sStamp + 2 * i}")
            e(f"v_mov_b32 v54, s62\nv_mov_b32 v55, s{sSpin}")
            e(f"s_lshl_b32 s61, s2, 2\ns_add_u32 s61, s61, s{sW}\ns_lshl_b32 s61, s61, 6\ns_add_u32 s61, s61, {WS_DBG}")
            e("s_mov_b64 exec, 1")
            e(f"buffer_store_dwordx4 v[46:49], off, {srd(SWS)}, s61")
            e(f"buffer_store_dwordx4 v[50:53], off, {srd(SWS)}, s61 offset:16")
            e(f"buffer_store_dwordx2 v[54:55], off, {srd(SWS)}, s61 offset:32")
        e.label("L_exit")
        e("s_endpgm")

    def emit_stubs(self):
        e = self.e
        for name, body in self.stubs:
            e.label(name)
            e.forget()
            e("s_nop 7")
            body()
            e(f"s_add_u32 s{sSpin}, s{sSpin}, 1")
            e(f"s_cbranch_vccz {name}_back")
            e(f"s_cmp_lt_u32 s{sSpin}, {SPIN}\ns_cbranch_scc1 {name}\ns_branch {name}_back")

    def spare(self):
        e = self.e
        t = sT
        e.label("L_spare")
        e.forget()
        e.smem.append([("s", sN)])
        SWG, SGG = SWF, SWO
        self.mk_srd(SWG, 14, 41472)
        self.mk_srd(SGG, 10, 4608)
        e(f"s_mul_i32 s{t + 3}, s{sW}, 11264")
        for l in self.dma_w(SWG, 0):
            e(l)
        e(f"""
        v_and_b32 v46, 7, v{vLane}
        v_lshrrev_b32 v47, 4, v{vLane}
        v_mul_u32_u24 v48, 288, v46
        v_lshl_add_u32 v48, v47, 3, v48
        s_mul_i32 s{t}, s{sB}, 2304
        """)
        for s in range(4):
            for h in range(2):
                e(f"buffer_load_dwordx2 {vr(60 + 4 * s + 2 * h, 2)}, v48, {srd(SGG)}, s{t} offen offset:{64 * s + 32 * h}")
        e(f"buffer_load_dwordx2 {vr(76, 2)}, v48, {srd(SGG)}, s{t} offen offset:256")
        e(f"""
        v_lshrrev_b32 v49, 2, v{vLane}
        v_mul_u32_u24 v49, 288, v49
        v_and_b32 v50, 3, v{vLane}
        v_lshl_add_u32 v49, v50, 3, v49
        s_lshl_b32 s{t + 1}, s{sW}, 5
        v_add_u32 v49, s{t + 1}, v49
        v_mul_u32_u24 v51, 576, v46
        v_lshl_add_u32 v51, v47, 4, v51
        s_mul_i32 s{t + 2}, s{sQ}, 4608
        s_add_u32 s{t + 2}, s{t + 2}, {WS_GE}
        s_lshl_b32 s{t + 1}, s{sW}, 6
        s_add_u32 s{t + 2}, s{t + 2}, s{t + 1}
        s_mov_b32 s{t + 5}, s{sW}
        s_mul_i32 s{sN}, s{sN}, 1664525
        s_add_u32 s{sN}, s{sN}, 1013904223
        v_mov_b32 v52, s{sN}
        """)
        e.wait(vm=0)
        e("s_barrier")
        e.label("L_sp1")
        e.forget()
        for s in range(5):
            for h in range(2 if s < 4 else 1):
                e(f"ds_read_b64_tr_b16 {vr(80 + 4 * s + 2 * h, 2)}, v49 offset:{(32 * s + 16 * h) * 288}")
        for s in range(4):
            e(f"v_mfma_f32_16x16x32_bf16 v[100:103], {vr(80 + 4 * s)}, {vr(60 + 4 * s)}, {'v[100:103]' if s else '0'}")
        e("v_mfma_f32_16x16x16_bf16 v[100:103], v[96:97], v[76:77], v[100:103]")
        for q in range(4):
            e(f"v_mul_f32 v{104 + q}, {f32(S2)}, v{100 + q}")
        e(f"buffer_store_dwordx4 v[104:107], v51, {srd(SWS)}, s{t + 2} offen sc1")
        e(f"""
        v_add_u32 v49, 128, v49
        s_add_u32 s{t + 2}, s{t + 2}, 256
        s_add_u32 s{t + 5}, s{t + 5}, 4
        s_cmp_lt_u32 s{t + 5}, 9
        s_cbranch_scc1 L_sp1
        """)
        e.wait(vm=0)
        e("s_barrier")
        e(f"""
        s_cmp_eq_u32 s{sW}, 0
        s_cbranch_scc0 L_sp2
        s_add_u32 s{t}, s{sQ}, {252 + WS_FCL // 128}
        s_lshl_b32 s{t}, s{t}, 7
        s_mov_b64 exec, 1
        buffer_store_dword v52, off, {srd(SWS)}, s{t} sc1
        """)
        e.label("L_sp2")
        e("s_endpgm")

    def build(self):
        e = self.e
        e.raw(f"; @launch grid=(256,1,1) block=(256,1,1) lds={LDS_SIZE}")
        e.raw('.amdgcn_target "amdgcn-amd-amdhsa--gfx950"')
        e.raw(f".text\n.globl {KN}\n.p2align 8\n.type {KN},@function\n{KN}:")
        e(f"s_mov_b32 s{sSpin}, 0")
        self.prologue()
        self.setup()
        self.produce()
        self.conv1()
        self.transition()
        self.conv2()
        self.joint()
        self.epilogue()
        self.emit_stubs()
        self.spare()
        e.label("L_codeend")
        e.raw('.section .rodata,"a"\n.p2align 6')
        e.raw(f".amdhsa_kernel {KN}")
        e.raw("  .amdhsa_next_free_vgpr 512\n  .amdhsa_next_free_sgpr 102\n  .amdhsa_accum_offset 256\n"
              "  .amdhsa_group_segment_fixed_size 0\n  .amdhsa_kernarg_size 80\n  .amdhsa_user_sgpr_count 2\n"
              "  .amdhsa_user_sgpr_kernarg_segment_ptr 1\n  .amdhsa_system_sgpr_workgroup_id_x 1\n.end_amdhsa_kernel")
        return e.text()


if __name__ == "__main__":
    out = sys.argv[1]
    kw = eval("dict(" + (sys.argv[2] if len(sys.argv) > 2 else "") + ")")
    g = Gen(**kw)
    open(out, "w").write(g.build())
    print("written", out, "nops", g.e.nops, "lines", len(g.e.L))
```

```python
import math
import struct
import sys
from emit import Em, weave

KN = "standalone__seq2seq_rnn_t_joint__speech_kernel"


def f32(x):
    return "0x%08x" % struct.unpack("<I", struct.pack("<f", x))[0]


def vr(b, n=4):
    return f"v[{b}:{b + n - 1}]" if n > 1 else f"v{b}"


def ar(b, n=4):
    return f"a[{b}:{b + n - 1}]" if n > 1 else f"a{b}"


WS_FW2 = 0x1000
WS_FCL = 0x10000
WS_GE = 0x20000
WS_W1 = 0x30000
WS_W2 = 0x180000
WS_P = 0x300000
WS_DBG = 0x1000000
PSTR = 24576
BIG = 0x80000000
L_X = 0
L_WF = 0
L_WO = 45056
L_RED = 110592
L_H = 155648
L_FS = L_RED + 20480
LDS_SIZE = 161792
SPIN = 20000

SX, SW1R, SWS, SWF, SWO, SOUT, SW2R = 24, 28, 32, 36, 40, 44, 48
sQ, sJ, sG, sB, sGi, sW, sN = 54, 55, 56, 57, 58, 59, 60
sT = 61
sW1, sW2, sP, sPc = 70, 71, 72, 73
sMask = 74
sSpin = 80
sGeO = 81
sStamp = 82
sC = 98
sIS = 100

(vT1o, vLane, vL16, vL16b, vChk, vXa0, vXa1, vXa2, vRedW, vRedR, vHw, vHr, vHr9, vN9W, vN9R, vRedL, vPst, vPst9,
 vT1, vT2, vPl, vPl4, vPl9, vPl9b, vFw, vFw9, vFr, vFr9, vOut, vOut9, vGe, vFlA, vFlC, vCs) = range(34)
vAI, vA9, vSent = 34, 38, 42
RING, NSLOT = 46, 24
WBUF = 142
WCHK = 202
VWF = 206
A_W2, A_ACC, A_WF = 0, 144, 144

C1 = 2.0 * math.sqrt(2.0 / math.pi) * math.log2(math.e)
C2 = C1 * 0.044715
S2 = 2.0 * math.log2(math.e)


def srd(i):
    return f"s[{i}:{i + 3}]"


class Gen:
    def __init__(self, stamps=False, nx=(27, 27, 27, 27), plpos=40, outflags=""):
        self.e = Em()
        self.stamps = stamps
        self.nx = nx
        self.plpos = plpos
        self.outflags = outflags
        self.stubs = []
        self.nst = 0
        self.stnames = []

    SLOTS = list(range(82, 94)) + list(range(4, 20))

    def stamp(self, name="", lvl=1):
        if self.stamps >= lvl:
            i = self.SLOTS[self.nst]
            self.nst += 1
            self.stnames.append(name)
            self.e("s_memtime s[94:95]")
            self.e.wait(lg=0)
            self.e(f"s_mov_b32 s{i}, s94")

    def mk_srd(self, d, base, size):
        self.e(f"s_mov_b32 s{d}, s{base}\ns_mov_b32 s{d + 1}, s{base + 1}\ns_mov_b32 s{d + 2}, {size}\ns_mov_b32 s{d + 3}, 0x20000")

    def gelu_pairs(self, pairs, tmp, scaled=False):
        e = self.e
        for x, t in zip(pairs, tmp):
            e(f"v_pk_mul_f32 {vr(t, 2)}, {vr(x, 2)}, {vr(x, 2)}")
        for x, t in zip(pairs, tmp):
            e(f"v_pk_fma_f32 {vr(t, 2)}, {vr(t, 2)}, s[{sC}:{sC + 1}], s[{sC}:{sC + 1}] op_sel:[0,0,1] op_sel_hi:[1,0,1]")
        for x, t in zip(pairs, tmp):
            e(f"v_pk_mul_f32 {vr(t, 2)}, {vr(t, 2)}, {vr(x, 2)}")
        for x, t in zip(pairs, tmp):
            e(f"v_exp_f32 v{t}, v{t}\nv_exp_f32 v{t + 1}, v{t + 1}")
        for x, t in zip(pairs, tmp):
            if scaled:
                e(f"v_pk_fma_f32 {vr(t, 2)}, {vr(t, 2)}, s[{sIS}:{sIS + 1}], s[{sIS}:{sIS + 1}]")
            else:
                e(f"v_pk_add_f32 {vr(t, 2)}, {vr(t, 2)}, 1.0 op_sel_hi:[1,0]")
        for x, t in zip(pairs, tmp):
            e(f"v_rcp_f32 v{t}, v{t}\nv_rcp_f32 v{t + 1}, v{t + 1}")
        for x, t in zip(pairs, tmp):
            e(f"v_pk_mul_f32 {vr(x, 2)}, {vr(x, 2)}, {vr(t, 2)}")

    def prologue(self):
        e = self.e
        e("s_cmp_ge_u32 s2, 256\ns_cbranch_scc1 L_exit")
        e("s_load_dwordx16 s[4:19], s[0:1], 0\ns_load_dwordx4 s[20:23], s[0:1], 64")
        if self.stamps:
            e("s_memrealtime s[96:97]")
        e("s_getpc_b64 s[52:53]")
        e.label("L_pc")
        e("v_lshlrev_b32 v1, 7, v0")
        e("v_min_u32 v1, L_codeend-L_pc-4, v1")
        e("global_load_dword v255, v1, s[52:53]")
        e(f"v_lshrrev_b32 v2, 6, v0\nv_and_b32 v{vLane}, 63, v0")
        e(f"v_readfirstlane_b32 s{sW}, v2")
        t = sT
        e(f"""
        s_and_b32 s{t}, s2, 1
        s_lshl_b32 s{t}, s{t}, 5
        s_lshr_b32 s{t + 1}, s2, 3
        s_add_u32 s{t}, s{t}, s{t + 1}
        s_bfe_u32 s{sQ}, s2, 0x20001
        s_mul_i32 s{sJ}, s{t}, 37
        s_lshr_b32 s{sJ}, s{sJ}, 8
        s_mul_i32 s{t + 1}, s{sJ}, 7
        s_sub_u32 s{t + 2}, s{t}, s{t + 1}
        s_mul_i32 s{sG}, s{sQ}, 7
        s_add_u32 s{sG}, s{sG}, s{t + 2}
        s_lshr_b32 s{sB}, s{sQ}, 1
        s_mul_i32 s{t + 1}, s{sB}, 14
        s_sub_u32 s{sGi}, s{sG}, s{t + 1}
        s_mul_i32 s{t + 3}, s{sB}, 1152000
        """)
        e(f"v_lshlrev_b32 v{vL16}, 4, v{vLane}")
        e(f"v_lshrrev_b32 v46, 1, v{vLane}\nv_and_b32 v47, 1, v{vLane}\nv_lshlrev_b32 v47, 4, v47")
        e.wait(lg=0)
        self.stamp("karg")
        e(f"s_load_dword s{sN}, s[22:23], 0")
        self.mk_srd(SWS, 22, 0x10000000)
        e(f"s_cmp_eq_u32 s{sJ}, 9\ns_cbranch_scc1 L_spare")
        self.mk_srd(SW1R, 6, 1285632)
        self.mk_srd(SW2R, 8, 1285632)
        e(f"s_add_u32 s{SX}, s4, s{t + 3}\ns_addc_u32 s{SX + 1}, s5, 0\ns_mov_b32 s{SX + 2}, 1152000\ns_mov_b32 s{SX + 3}, 0x20000")
        e(f"s_cmp_eq_u32 s{sW}, 0\ns_cbranch_scc0 L_g1")
        e("v_mul_u32_u24 v48, 288, v46\nv_add_u32 v48, v48, v47")
        e(f"""
        s_lshl_b32 s{t + 3}, s{sQ}, 5
        s_add_u32 s{t + 4}, s{t + 3}, {160 - 288 * 16}
        s_mul_i32 s{t + 5}, s{sQ}, 1152
        s_add_u32 s{t + 5}, s{t + 5}, {128 - 288 * 31}
        s_mul_i32 s{t + 2}, s{t + 2}, 5
        s_lshl_b32 s{t + 6}, s{sJ}, 5
        s_mov_b32 m0, {L_RED}
        """)
        for i in range(5):
            e(f"""
            s_cmp_lt_u32 s{t + 2}, 31
            s_cselect_b32 s{t}, s{t + 4}, s{t + 5}
            s_cmp_lt_u32 s{t + 2}, 16
            s_cselect_b32 s{t}, s{t + 3}, s{t}
            s_mul_i32 s{t + 1}, s{t + 2}, 288
            s_add_u32 s{t}, s{t}, s{t + 1}
            s_mul_i32 s{t}, s{t}, 288
            s_add_u32 s{t}, s{t}, s{t + 6}
            buffer_load_dwordx4 v48, {srd(SW1R)}, s{t} offen lds
            """)
            if i < 4:
                e(f"s_add_u32 m0, m0, 1024\ns_add_u32 s{t + 2}, s{t + 2}, 1")
        e("s_branch L_g2")
        e.label("L_g1")
        e(f"s_cmp_eq_u32 s{sW}, 1\ns_cbranch_scc0 L_g2\ns_cmp_lt_u32 s{sG}, 24\ns_cbranch_scc0 L_g2")
        e(f"""
        v_and_b32 v48, 15, v46
        v_mul_u32_u24 v48, 288, v48
        v_lshrrev_b32 v49, 4, v46
        v_mul_u32_u24 v49, 41472, v49
        v_add3_u32 v48, v48, v49, v47
        s_mul_i32 s{t + 3}, s{sG}, 43
        s_lshr_b32 s{t + 3}, s{t + 3}, 8
        s_mul_i32 s{t + 2}, s{t + 3}, 6
        s_sub_u32 s{t + 2}, s{sG}, s{t + 2}
        s_mul_i32 s{t + 2}, s{t + 2}, 6
        s_mul_i32 s{t + 6}, s{sJ}, 4608
        s_mov_b32 m0, {L_RED + 5120}
        """)
        for i in range(6):
            e(f"""
            s_sub_u32 s{t}, s{t + 2}, 4
            s_lshr_b32 s{t}, s{t}, 1
            s_lshl_b32 s{t + 1}, s{t + 3}, 6
            s_add_u32 s{t + 1}, s{t + 1}, {32 * (i & 1)}
            s_lshl_b32 s{t + 4}, s{t + 3}, 2
            s_add_u32 s{t + 4}, s{t + 4}, s{t + 2}
            s_cmp_lt_u32 s{t + 2}, 4
            s_cselect_b32 s{t}, s{t + 4}, s{t}
            s_cselect_b32 s{t + 1}, 256, s{t + 1}
            s_mul_i32 s{t}, s{t}, 82944
            s_add_u32 s{t}, s{t}, s{t + 1}
            s_add_u32 s{t}, s{t}, s{t + 6}
            buffer_load_dwordx4 v48, {srd(SW2R)}, s{t} offen lds
            """)
            if i < 5:
                e(f"s_add_u32 m0, m0, 1024\ns_add_u32 s{t + 2}, s{t + 2}, 1")
        e.label("L_g2")
        e.forget()
        e.smem.append([("s", sN)])
        nx = self.nx
        assert sum(nx) == 108
        st = [sum(nx[:i]) * 1024 for i in range(5)]
        e(f"""
        s_mov_b32 s{t + 1}, {st[1]}
        s_cmp_eq_u32 s{sW}, 1
        s_cselect_b32 s{t}, {st[1]}, {st[0]}
        s_cselect_b32 s{t + 1}, {st[2]}, s{t + 1}
        s_cmp_eq_u32 s{sW}, 2
        s_cselect_b32 s{t}, {st[2]}, s{t}
        s_cselect_b32 s{t + 1}, {st[3]}, s{t + 1}
        s_cmp_eq_u32 s{sW}, 3
        s_cselect_b32 s{t}, {st[3]}, s{t}
        s_cselect_b32 s{t + 1}, {st[4]}, s{t + 1}
        s_mul_i32 s{t + 2}, s{sGi}, 82944
        s_sub_u32 s{t + 2}, s{t + 2}, 13056
        s_add_u32 s{t + 2}, s{t + 2}, s{t}
        s_mov_b32 m0, s{t}
        v_add_u32 v50, s{t + 2}, v{vL16}
        """)
        if min(nx) == 0:
            e(f"s_cmp_eq_u32 s{t}, s{t + 1}\ns_cbranch_scc1 L_xdone")
        e.label("L_xl")
        e(f"""
        buffer_load_dwordx4 v50, {srd(SX)}, 0 offen lds
        s_add_u32 m0, m0, 1024
        v_add_u32 v50, 1024, v50
        s_cmp_lt_u32 m0, s{t + 1}
        s_cbranch_scc1 L_xl
        """)
        e.label("L_xdone")
        e.vm = []

    def setup(self):
        e = self.e
        t = sT
        m, g, a, b, c = 46, 47, 48, 49, 50
        self.mk_srd(SWF, 12, 41472)
        self.mk_srd(SWO, 16, 41472)
        self.mk_srd(SOUT, 18, 4608000)
        e(f"""
        v_and_b32 v{m}, 15, v{vLane}
        v_lshrrev_b32 v{g}, 4, v{vLane}
        v_add_u32 v{vL16b}, 4096, v{vL16}
        v_lshlrev_b32 v{vChk}, 2, v{vLane}
        v_add_u32 v{vChk}, 5120, v{vChk}
        v_mul_u32_u24 v{a}, 6336, v{m}
        v_lshl_add_u32 v{a}, v{g}, 4, v{a}
        s_lshl_b32 s{t}, s{sW}, 6
        s_add_u32 s{t}, s{t}, {L_X + 96}
        v_add_u32 v{vXa0}, s{t}, v{a}
        v_add_u32 v{vXa1}, 320, v{vXa0}
        s_mul_i32 s{t}, s{sW}, 2304
        s_add_u32 s{t}, s{t}, {L_X + 96 + 256}
        v_add_u32 v{vXa2}, s{t}, v{a}
        v_add_u32 v{vRedL}, {L_RED}, v{vL16}
        s_mul_i32 s{t}, s{sW}, 11264
        v_add_u32 v{vRedW}, s{t}, v{vRedL}
        s_mul_i32 s{t + 1}, s{sW}, 3
        s_min_u32 s{t + 1}, s{t + 1}, 8
        s_lshl_b32 s{t}, s{t + 1}, 10
        v_add_u32 v{vRedR}, s{t}, v{vRedL}
        s_mul_i32 s{t}, s{sW}, 5120
        v_add_u32 v{vN9W}, s{t}, v{vRedL}
        s_lshl_b32 s{t}, s{sW}, 10
        v_add_u32 v{vN9R}, s{t}, v{vRedL}
        v_mul_u32_u24 v{a}, 11, v{m}
        v_add_u32 v{a}, s{t + 1}, v{a}
        v_lshlrev_b32 v{b}, 5, v{a}
        v_lshl_add_u32 v{b}, v{g}, 3, v{b}
        v_add_u32 v{vHw}, {L_H}, v{b}
        s_mul_i32 s{t}, s{sGi}, 144
        s_sub_u32 s{t}, s{t}, 15
        s_movk_i32 s{t + 2}, 2000
        v_add_u32 v{a}, s{t}, v{a}
        v_cmp_gt_u32_e64 s[{sMask}:{sMask + 1}], s{t + 2}, v{a}
        v_add_u32 v{a}, 1, v{a}
        v_cmp_gt_u32_e64 s[{sMask + 2}:{sMask + 3}], s{t + 2}, v{a}
        v_add_u32 v{a}, 1, v{a}
        v_cmp_gt_u32_e64 s[{sMask + 4}:{sMask + 5}], s{t + 2}, v{a}
        v_mul_u32_u24 v{a}, 320, v{m}
        v_lshl_add_u32 v{a}, v{g}, 4, v{a}
        v_add_u32 v{vHr}, {L_H}, v{a}
        s_lshl_b32 s{t}, s{sW}, 8
        v_add_u32 v{vHr9}, s{t}, v{vHr}
        v_lshlrev_b32 v{a}, 6, v{m}
        v_lshl_add_u32 v{vPst}, v{g}, 4, v{a}
        v_lshrrev_b32 v{vPst9}, 1, v{vPst}
        v_add_u32 v{vPst9}, 20480, v{vPst9}
        v_lshrrev_b32 v{a}, 2, v{vLane}
        v_mul_u32_u24 v{a}, 288, v{a}
        v_and_b32 v{b}, 3, v{vLane}
        v_lshl_add_u32 v{vT1}, v{b}, 3, v{a}
        v_add_u32 v{vT1o}, {L_WO}, v{vT1}
        v_lshl_add_u32 v{vT2}, v{b}, 3, v{vT1o}
        """)
        e(f"""
        s_mul_i32 s{t}, s{sJ}, 28
        s_mul_i32 s{t + 1}, s{sW}, 7
        s_add_u32 s{t}, s{t}, s{t + 1}
        s_mul_i32 s{sW1}, s{t}, 5376
        s_add_u32 s{sW1}, s{sW1}, {WS_W1}
        s_lshl_b32 s{t}, s{sJ}, 2
        s_add_u32 s{t + 8}, s{t}, s{sW}
        s_mul_i32 s{sW2}, s{t + 8}, 36864
        s_add_u32 s{sW2}, s{sW2}, {WS_W2}
        s_mul_i32 s{sPc}, s{sG}, {9 * PSTR}
        s_add_u32 s{sPc}, s{sPc}, {WS_P}
        s_mul_i32 s{sP}, s{sJ}, {PSTR}
        s_add_u32 s{sP}, s{sP}, s{sPc}
        s_mul_i32 s{sGeO}, s{sQ}, 4608
        s_add_u32 s{sGeO}, s{sGeO}, {WS_GE}
        s_mov_b32 s{sC}, {f32(-C2)}
        s_mov_b32 s{sC + 1}, {f32(-C1)}
        s_mov_b32 s{sIS}, {f32(1.0 / S2)}
        s_mov_b32 s{sIS + 1}, {f32(1.0 / S2)}
        """)
        e(f"""
        s_mul_i32 s{t}, s{t + 8}, 37
        s_lshr_b32 s{t}, s{t}, 8
        s_mul_i32 s{t + 1}, s{t}, 7
        s_sub_u32 s{t + 1}, s{t + 8}, s{t + 1}
        s_lshl_b32 s{t + 1}, s{t + 1}, 1
        s_cmp_eq_u32 s{t + 8}, 35
        s_cselect_b32 s{t}, 0, s{t}
        s_cselect_b32 s{t + 1}, 14, s{t + 1}
        s_cselect_b32 s{t + 2}, 512, 32
        s_cselect_b32 s{t + 3}, 1, 5
        s_lshl_b32 s{t + 4}, s{t}, 9
        s_lshl_b32 s{t + 5}, s{t + 1}, 5
        s_add_u32 s{t + 4}, s{t + 4}, s{t + 5}
        s_mul_i32 s{t + 5}, s{t + 1}, 5
        s_add_u32 s{t + 5}, s{t + 5}, s{t}
        s_mul_i32 s{t + 6}, s{sGi}, 72
        s_add_u32 s{t + 5}, s{t + 5}, s{t + 6}
        s_lshl_b32 s{t + 6}, s{t + 2}, 1
        s_lshl_b32 s{t + 7}, s{t + 4}, 1
        """)
        e(f"""
        v_lshrrev_b32 v{a}, 5, v{vLane}
        v_mul_u32_u24 v{a}, {PSTR}, v{a}
        v_bfe_u32 v{b}, v{vLane}, 3, 2
        v_mul_u32_u24 v{b}, 5120, v{b}
        v_add3_u32 v{a}, v{a}, v{b}, s{t + 7}
        v_bfe_u32 v{b}, v{vLane}, 2, 1
        v_mad_u32_u24 v{a}, v{b}, s{t + 6}, v{a}
        v_and_b32 v{c}, 3, v{vLane}
        v_lshl_add_u32 v{vPl}, v{c}, 4, v{a}
        v_mov_b32 v51, {BIG}
        v_cmp_gt_u32 vcc, 32, v{vLane}
        v_cndmask_b32 v{vPl4}, v51, v{vPl}, vcc
        v_mul_u32_u24 v{b}, 288, v{b}
        v_lshl_add_u32 v{b}, v{c}, 4, v{b}
        v_lshrrev_b32 v{a}, 5, v{vLane}
        v_lshl_add_u32 v{b}, v{a}, 7, v{b}
        v_bfe_u32 v{a}, v{vLane}, 4, 1
        v_lshl_add_u32 v{b}, v{a}, 3, v{b}
        v_bfe_u32 v52, v{vLane}, 3, 1
        v_lshl_add_u32 v{b}, v52, 6, v{b}
        s_mul_i32 s{t}, s{sW}, 640
        s_add_u32 s{t}, s{t}, {L_FS}
        v_add_u32 v{vFw}, s{t}, v{b}
        v_and_b32 v53, 7, v{vLane}
        v_mul_u32_u24 v{a}, {PSTR}, v{g}
        v_mad_u32_u24 v{a}, v52, s{t + 2}, v{a}
        v_lshl_add_u32 v{a}, v53, 2, v{a}
        s_add_u32 s{t + 4}, s{t + 4}, 20480
        v_add_u32 v{vPl9}, s{t + 4}, v{a}
        v_cmp_gt_u32_e64 s[{t + 7}:{t + 8}], 16, v{vLane}
        v_mul_u32_u24 v{a}, 288, v52
        v_add_u32 v{a}, s{t}, v{a}
        v_cndmask_b32_e64 v{vPl9b}, v51, v{vPl9}, s[{t + 7}:{t + 8}]
        v_lshl_add_u32 v{vFr}, v{g}, 4, v{a}
        v_add_u32 v{a}, 256, v{a}
        v_lshl_add_u32 v{vFr9}, v{g}, 3, v{a}
        v_lshl_add_u32 v{a}, v53, 2, v{a}
        v_lshl_add_u32 v{a}, v{g}, 1, v{a}
        s_add_u32 s{t}, s{t}, 512
        v_lshl_add_u32 v{b}, v{vLane}, 1, s{t}
        v_cndmask_b32 v{vFw9}, v{b}, v{a}, vcc
        v_mul_u32_u24 v{a}, 576, v53
        v_lshl_add_u32 v{vGe}, v{g}, 4, v{a}
        v_mov_b32 v{a}, s{t + 5}
        v_mad_u32_u24 v{a}, v52, s{t + 3}, v{a}
        v_cmp_gt_u32 vcc, 1000, v{a}
        s_mul_i32 s{t}, s{sB}, 1000
        v_add_u32 v{a}, s{t}, v{a}
        v_lshl_add_u32 v{a}, v{a}, 3, v53
        v_mul_u32_u24 v{a}, 288, v{a}
        v_cndmask_b32 v{a}, v51, v{a}, vcc
        v_lshl_add_u32 v{vOut}, v{g}, 4, v{a}
        v_add_u32 v{a}, 256, v{a}
        v_lshl_add_u32 v{vOut9}, v{g}, 3, v{a}
        """)
        e(f"""
        s_mul_i32 s{t}, s{sJ}, 24
        s_mul_i32 s{t + 1}, s{sW}, 6
        s_add_u32 s{t}, s{t}, s{t + 1}
        s_add_u32 s{t}, s{t}, {WS_FW2 // 128}
        v_min_u32 v{a}, 5, v{vLane}
        v_add_lshl_u32 v{vFlA}, v{a}, s{t}, 7
        s_mul_i32 s{t}, s{sG}, 9
        v_add_u32 v{a}, s{t}, v{vLane}
        v_add_u32 v{b}, 243, v{vLane}
        v_min_u32 v{b}, 255, v{b}
        v_cmp_gt_u32 vcc, 9, v{vLane}
        s_movk_i32 s{t}, {WS_FCL // 128}
        v_cndmask_b32 v{a}, v{b}, v{a}, vcc
        v_add_lshl_u32 v{vFlC}, v{a}, s{t}, 7
        """)
        e(f"""
        v_and_b32 v{a}, 1, v{g}
        v_lshlrev_b32 v{a}, 3, v{a}
        v_sub_u32 v{a}, v{m}, v{a}
        v_and_b32 v{b}, 1, v{a}
        v_lshlrev_b32 v{b}, 4, v{b}
        v_mov_b32 v{c}, 0x3f80
        v_lshlrev_b32 v{b}, v{b}, v{c}
        v_lshrrev_b32 v{a}, 1, v{a}
        """)
        for q in range(4):
            e(f"v_cmp_eq_u32 vcc, {q}, v{a}\nv_mov_b32 v{vSent + q}, -1\nv_cndmask_b32 v{vAI + q}, 0, v{b}, vcc")
        e(f"""
        v_cmp_eq_u32 vcc, 0, v{m}
        v_lshlrev_b32 v{b}, 16, v{c}
        v_cndmask_b32 v{vA9}, 0, v{c}, vcc
        v_cmp_eq_u32 vcc, 4, v{m}
        v_cndmask_b32 v{vA9}, v{vA9}, v{b}, vcc
        v_mov_b32 v{vA9 + 1}, v{vA9}
        v_mov_b32 v{vA9 + 2}, v{vA9}
        v_mov_b32 v{vA9 + 3}, v{vA9}
        """)
        e(f"v_lshlrev_b32 v{a}, 8, v{g}\nv_lshl_add_u32 v{a}, v{m}, 3, v{a}\nv_add_u32 v54, {L_RED}, v{a}")
        e(f"s_mul_i32 s{sN}, s{sN}, 1664525\ns_add_u32 s{sN}, s{sN}, 1013904223")

    def checksum(self, base):
        L = []
        for i in range(10):
            prev = f"s{sN}" if i == 0 else f"v{vCs}"
            L.append(f"v_add3_u32 v{vCs}, v{base + 2 * i}, v{base + 2 * i + 1}, {prev}")
        return L

    def produce(self):
        e = self.e
        t = sT
        R = 56
        e(f"s_cmp_eq_u32 s{sW}, 0\ns_cbranch_scc0 L_p1")
        e(f"s_mul_i32 s{t}, s{sJ}, 28\ns_add_u32 s{t}, s{t}, s{sG}\ns_mul_i32 s{t}, s{t}, 5376\ns_add_u32 s{t}, s{t}, {WS_W1}")
        e.wait(vm=self.nx[0])
        for i in range(5):
            for h in range(2):
                e(f"ds_read_b64_tr_b16 {vr(R + 4 * i + 2 * h, 2)}, v54 offset:{1024 * i + 128 * h}")
        cs = self.checksum(R)
        for i in range(5):
            a, o = (vL16, 1024 * i) if i < 4 else (vL16b, 0)
            e(f"buffer_store_dwordx4 {vr(R + 4 * i)}, v{a}, {srd(SWS)}, s{t} offen offset:{o} sc1")
            e(cs[2 * i])
            e(cs[2 * i + 1])
        e(f"buffer_store_dword v{vCs}, v{vChk}, {srd(SWS)}, s{t} offen sc1")
        e("s_branch L_p2")
        e.label("L_p1")
        e.forget()
        e(f"s_cmp_eq_u32 s{sW}, 1\ns_cbranch_scc0 L_p2\ns_cmp_lt_u32 s{sG}, 24\ns_cbranch_scc0 L_p2")
        e(f"""
        s_mul_i32 s{t}, s{sJ}, 24
        s_add_u32 s{t + 1}, s{t}, s{sG}
        s_mul_i32 s{t}, s{t + 1}, 6144
        s_add_u32 s{t}, s{t}, {WS_W2}
        s_lshl_b32 s{t + 1}, s{t + 1}, 7
        s_add_u32 s{t + 1}, s{t + 1}, {WS_FW2}
        v_mov_b32 v55, s{sN}
        """)
        e.wait(vm=self.nx[1])
        for i in range(6):
            for h in range(2):
                e(f"ds_read_b64_tr_b16 {vr(R + 4 * i + 2 * h, 2)}, v54 offset:{5120 + 1024 * i + 128 * h}")
        for i in range(6):
            a, o = (vL16, 1024 * i) if i < 4 else (vL16b, 1024 * (i - 4))
            e(f"buffer_store_dwordx4 {vr(R + 4 * i)}, v{a}, {srd(SWS)}, s{t} offen offset:{o} sc1")
        e.wait(vm=0)
        e("s_mov_b64 exec, 1")
        e(f"buffer_store_dword v55, off, {srd(SWS)}, s{t + 1} sc1")
        e("s_mov_b64 exec, -1")
        e.label("L_p2")
        e.forget()

    def w1_loads(self, c, soff):
        b = WBUF + 20 * (c % 3)
        L = []
        for i in range(5):
            a, o = (vL16, 1024 * i) if i < 4 else (vL16b, 0)
            L.append(f"buffer_load_dwordx4 {vr(b + 4 * i)}, v{a}, {srd(SWS)}, s{soff} offen offset:{o} sc1")
        L.append(f"buffer_load_dword v{WCHK + c % 3}, v{vChk}, {srd(SWS)}, s{soff} offen sc1")
        return L

    def add_stub(self, name, body):
        self.stubs.append((name, body))

    def w1_check(self, c):
        e = self.e
        e(f"v_cmp_ne_u32 vcc, v{vCs}, v{WCHK + c % 3}")
        e(f"s_cbranch_vccnz L_r1_{c}")
        e.label(f"L_r1_{c}_back")

        def body():
            e(f"s_add_u32 s{sT + 8}, s{sW1}, {5376 * c}")
            for l in self.w1_loads(c, sT + 8):
                e(l)
            e.wait(vm=0)
            for l in self.checksum(WBUF + 20 * (c % 3)):
                e(l)
            e(f"v_cmp_ne_u32 vcc, v{vCs}, v{WCHK + c % 3}")
        self.add_stub(f"L_r1_{c}", body)

    def flag_check(self, name, vaddr, vdata):
        e = self.e
        e(f"v_cmp_ne_u32 vcc, s{sN}, v{vdata}")
        e(f"s_cbranch_vccnz {name}")
        e.label(f"{name}_back")

        def body():
            e(f"buffer_load_dword v{vdata}, v{vaddr}, {srd(SWS)}, 0 offen sc1")
            e.wait(vm=0)
            e(f"v_cmp_ne_u32 vcc, s{sN}, v{vdata}")
        self.add_stub(name, body)

    def conv1(self):
        e = self.e
        t = sT
        e.wait(vm=0)
        self.stamp("xland")
        e(f"s_add_u32 s{t}, s{sW1}, 5376")
        for l in self.w1_loads(0, sW1) + self.w1_loads(1, t):
            e(l)
        e("s_barrier")
        seq = [(s, r) for s in range(31) for r in range(11)]
        seq += [(s, r) for r in range(11) for s in range(31, 35)]

        def frag(s, r):
            if s < 16:
                return (0, r + s)
            if s < 31:
                return (1, r + s - 16)
            return (2, r + s - 31)
        first, last = {}, {}
        for i, (s, r) in enumerate(seq):
            f = frag(s, r)
            first.setdefault(f, i)
            last[f] = i
        order = sorted(first, key=lambda f: first[f])
        free = [(-1, k) for k in range(NSLOT)]
        slot = {}
        fill = []
        LEAD = 26
        for n, f in enumerate(order):
            free.sort()
            avail, k = free.pop(0)
            slot[f] = k
            free.append((last[f], k))
            pos = max(avail, first[f] - LEAD)
            if f[0] > 0 and f[1] <= 10:
                pos = max(avail, first[(f[0], 0)] - 70 + 5 * f[1])
            if n < 13:
                pos = -1
            fill.append((pos, 1, f"ds_read_b128 {vr(RING + 4 * k)}, v{vXa0 + f[0]} offset:{576 * f[1]}", first[f]))
        for l in self.checksum(WBUF):
            fill.append((-1, 1, l))
        fill.append((-1, 1, lambda: self.w1_check(0)))
        fill.append((-1, 1, lambda: self.stamp("c0ok")))
        self.clr_tok = None
        for c in range(7):
            base = 55 * c
            if c + 2 < 7:
                fill.append((base, 0, f"s_add_u32 s{t}, s{sW1}, {5376 * (c + 2)}"))
                for k, l in enumerate(self.w1_loads(c + 2, t)):
                    fill.append((base + 2 * k, 1, l))
            if c < 6:
                def clr(c=c):
                    a, o = (vL16, 1024 * c) if c < 4 else (vL16b, 1024 * (c - 4))
                    self.clr_tok = e(f"buffer_store_dwordx4 {vr(vSent)}, v{a}, {srd(SWS)}, s{t + 1} offen offset:{o} sc1")
                if c == 0:
                    fill.append((base + 12, 0, f"s_mul_i32 s{t + 1}, s{sW}, 6144\ns_add_u32 s{t + 1}, s{t + 1}, s{sP}"))
                fill.append((base + 13, 1, clr))
                for k, l in enumerate(self.checksum(WBUF + 20 * ((c + 1) % 3))):
                    fill.append((base + 40 + k, 1, l))
                fill.append((base + 52, 1, (lambda c=c: self.w1_check(c + 1)), base + 55))
        fill.append((20, 1, f"buffer_load_dword v205, v{vFlA}, {srd(SWS)}, 0 offen sc1"))
        fill.append((68, 1, lambda: self.flag_check("L_r2", vFlA, 205)))
        pos = 70
        for p in range(36):
            if p % 4 == 0:
                fill.append((pos, 0, f"s_add_u32 s{t + 2}, s{sW2}, {1024 * p}"))
            fill.append((pos, 1, f"buffer_load_dwordx4 {ar(A_W2 + 4 * p)}, v{vL16}, {srd(SWS)}, s{t + 2} offen offset:{1024 * (p % 4)} sc1"))
            pos += 7
        for r in range(11):
            fill.append((341 + 4 * r + 3 + 5, 1, f"ds_write_b128 v{vRedW}, {ar(A_ACC + 4 * r)} offset:{1024 * r}"))
        mf = []
        for s, r in seq:
            w = WBUF + 20 * ((s // 5) % 3) + 4 * (s % 5)
            acc = ar(A_ACC + 4 * r)
            mf.append(f"v_mfma_f32_16x16x32_bf16 {acc}, {vr(w)}, {vr(RING + 4 * slot[frag(s, r)])}, {acc if s else '0'}")
        weave(e, mf, fill)

    def dma_w(self, s, ldsbase):
        t = sT
        L = []
        for k in range(11):
            pre = ""
            if k % 4 == 0:
                pre = f"s_add_u32 s{t + 4}, s{t + 3}, {1024 * k}\ns_add_u32 m0, s{t + 3}, {ldsbase + 1024 * k}\n"
            L.append(pre + f"buffer_load_dwordx4 v{vL16}, {srd(s)}, s{t + 4} offen offset:{1024 * (k % 4)} lds")
        return L

    def transition(self):
        e = self.e
        t = sT
        e.wait_tok(self.clr_tok)
        e.wait(lg=0)
        e("s_barrier")
        self.stamp("B2")
        R = RING
        for k in range(3):
            for s in range(4):
                e(f"ds_read_b128 {vr(R + 16 * k + 4 * s)}, v{vRedR} offset:{11264 * s + 1024 * k}")
        e(f"""
        s_mul_i32 s{t}, s{sG}, 9
        s_add_u32 s{t}, s{t}, s{sJ}
        s_lshl_b32 s{t}, s{t}, 7
        s_add_u32 s{t}, s{t}, {WS_FCL}
        s_mul_i32 s{t + 3}, s{sW}, 11264
        v_mov_b32 v{vCs}, s{sN}
        s_cmp_eq_u32 s{sW}, 0
        s_cbranch_scc0 L_nf
        s_mov_b64 exec, 1
        """)
        e(f"buffer_store_dword v{vCs}, off, {srd(SWS)}, s{t} sc1")
        e.vm.pop()
        e("s_mov_b64 exec, -1")
        e.label("L_nf")
        for l in self.dma_w(SWF, L_WF):
            self.wf_tok = e(l)
        for k in range(3):
            b = R + 16 * k
            for h in (0, 2):
                e(f"v_pk_add_f32 {vr(b + h, 2)}, {vr(b + h, 2)}, {vr(b + 4 + h, 2)}")
                e(f"v_pk_add_f32 {vr(b + 8 + h, 2)}, {vr(b + 8 + h, 2)}, {vr(b + 12 + h, 2)}")
            for h in (0, 2):
                e(f"v_pk_add_f32 {vr(b + h, 2)}, {vr(b + h, 2)}, {vr(b + 8 + h, 2)}")
        pairs = [R + 16 * k + h for k in range(3) for h in (0, 2)]
        self.gelu_pairs(pairs, [p + 4 for p in pairs])
        for k in range(3):
            b = R + 16 * k
            e(f"v_cvt_pk_bf16_f32 v{b}, v{b}, v{b + 1}\nv_cvt_pk_bf16_f32 v{b + 1}, v{b + 2}, v{b + 3}")
            e(f"v_cndmask_b32_e64 v{b}, 0, v{b}, s[{sMask + 2 * k}:{sMask + 2 * k + 1}]")
            e(f"v_cndmask_b32_e64 v{b + 1}, 0, v{b + 1}, s[{sMask + 2 * k}:{sMask + 2 * k + 1}]")
            e(f"ds_write_b64 v{vHw}, {vr(b, 2)} offset:{32 * k}")
        e.wait(lg=0)
        e("s_barrier")

    def wf_reg(self, eps, s):
        if s < 4:
            i = 4 * (4 * eps + s)
            return ("a", A_WF + i) if i < 112 else ("v", VWF + i - 112)
        return ("v", VWF + 32 + 2 * eps)

    def wo_reg(self, tile, s):
        if s < 4:
            return ("a", 4 * (9 * s + tile))
        return ("v", 46 + 2 * tile)

    @staticmethod
    def rr(fb, off, n):
        return f"{fb[0]}[{fb[1] + off}:{fb[1] + off + n - 1}]"

    def conv2(self):
        e = self.e
        t = sT
        BM, B9, ACC9, TMP, ACC, Z = 46, 126, 162, 182, 190, 126
        mf, fill = [], []
        for k in range(4):
            for r in range(5):
                acc = vr(ACC9 + 4 * r)
                mf.append(f"v_mfma_f32_16x16x32_bf16 {acc}, {ar(A_W2 + 4 * k)}, {vr(B9 + 4 * (r + k))}, {acc if k else '0'}")
        for r in range(5):
            for k in range(16):
                for ab in range(2):
                    acc = vr(ACC + 8 * (r & 1) + 4 * ab)
                    mf.append(f"v_mfma_f32_16x16x32_bf16 {acc}, {ar(A_W2 + 16 + 8 * k + 4 * ab)}, {vr(BM + 4 * (r + k))}, {acc if k else '0'}")
        for i in range(8):
            fill.append((-1, 1, f"ds_read_b128 {vr(B9 + 4 * i)}, v{vHr9} offset:{64 * i}"))
        for i in range(20):
            dl = 20 + 2 * i if i < 16 else 20 + 32 * (i - 15) + 30
            fill.append((i, 1, f"ds_read_b128 {vr(BM + 4 * i)}, v{vHr} offset:{64 * i}", dl))
        for r in range(5):
            fill.append((23 + r, 1, f"ds_write_b128 v{vN9W}, {vr(ACC9 + 4 * r)} offset:{1024 * r}"))

        def wo(l):
            self.wo_tok = e(l)
        for k, l in enumerate(self.dma_w(SWO, L_WO)):
            fill.append((28 + 2 * k, 1, (lambda l=l: wo(l))))
        fill.append((50, 0, f"s_mul_i32 s{t}, s{sW}, 5120\ns_add_u32 s{t}, s{t}, s{sP}\ns_add_u32 s{t + 1}, s{t}, 4096"))
        fill.append((50, 0, f"s_lshl_b32 s{t + 2}, s{sW}, 9\ns_add_u32 s{t + 2}, s{t + 2}, s{sP}"))
        for r in range(5):
            end = 20 + 32 * r + 31
            a = ACC + 8 * (r & 1)
            d = TMP + 4 * (r & 1)
            for q in range(4):
                fill.append((end + 4 + q // 2, 1, f"v_cvt_pk_bf16_f32 v{d + q}, v{a + 2 * q}, v{a + 2 * q + 1}", end + 30))
            so, o = (t, 1024 * r) if r < 4 else (t + 1, 0)
            fill.append((end + 6, 1, f"buffer_store_dwordx4 {vr(d)}, v{vPst}, {srd(SWS)}, s{so} offen offset:{o} sc1", end + 30))
        PB = 66

        def bar4():
            e.wait_tok(self.wf_tok)
            e.wait(lg=0)
            e("s_barrier")
        fill.append((PB, 2, bar4))
        for s in range(4):
            fill.append((PB + 1, 1, f"ds_read_b128 {vr(B9 + 4 * s)}, v{vN9R} offset:{5120 * s}"))
        for s in range(4):
            fill.append((PB + 1, 1, f"ds_read_b128 {vr(B9 + 16 + 4 * s)}, v{vRedL} offset:{5120 * s + 4096}"))
        fill.append((PB + 2, 1, f"buffer_load_dword v{vCs}, v{vFlC}, {srd(SWS)}, 0 offen sc1"))
        p = PB + 14
        for hb in (B9, B9 + 16):
            for q in range(4):
                fill.append((p, 1, f"v_add_f32 v{hb + q}, v{hb + q}, v{hb + 4 + q}"))
                fill.append((p, 1, f"v_add_f32 v{hb + 8 + q}, v{hb + 8 + q}, v{hb + 12 + q}"))
            for q in range(4):
                fill.append((p, 1, f"v_add_f32 v{hb + q}, v{hb + q}, v{hb + 8 + q}"))
            fill.append((p, 1, f"v_cvt_pk_bf16_f32 v{hb}, v{hb}, v{hb + 1}"))
            fill.append((p, 1, f"v_cvt_pk_bf16_f32 v{hb + 1}, v{hb + 2}, v{hb + 3}"))
        fill.append((p, 1, f"buffer_store_dwordx2 {vr(B9, 2)}, v{vPst9}, {srd(SWS)}, s{t + 2} offen sc1"))

        def st4():
            e(f"s_cmp_eq_u32 s{sW}, 0\ns_cbranch_scc0 L_n4")
            e(f"buffer_store_dwordx2 {vr(B9 + 16, 2)}, v{vPst9}, {srd(SWS)}, s{sP} offen offset:2048 sc1")
            e.vm.pop()
            e.label("L_n4")
        fill.append((p, 1, st4))
        p = PB + 5
        n = 0
        for eps in range(9):
            for s in range(5):
                fb = self.wf_reg(eps, s)
                for h in range(2 if s < 4 else 1):
                    fill.append((p + n, 1, f"ds_read_b64_tr_b16 {self.rr(fb, 2 * h, 2)}, v{vT1} offset:{L_WF + (32 * s + 16 * h) * 288 + 32 * eps}"))
                    n += 1
        fill.append((128, 1, lambda: self.flag_check("L_r3", vFlC, vCs)))
        for eps in range(9):
            fill.append((130 + eps, 1, f"buffer_load_dwordx4 {vr(Z + 4 * eps)}, v{vGe}, {srd(SWS)}, s{sGeO} offen offset:{64 * eps} sc1"))
        for q in range(4):
            fill.append((140, 1, f"v_mov_b32 v{vSent + q}, 0x3f803f80"))
        weave(e, mf, fill)

    def joint(self):
        e = self.e
        t = sT
        Z, PL, D, FB, TM, JP, OA, OP = 126, 64, 88, 96, 114, 64, 170, 96
        self.stamp("c2end")
        e.wait_tok(self.wo_tok)
        e("s_barrier")

        def ploads():
            for L in range(5):
                e(f"s_add_u32 s{t}, s{sPc}, {2 * PSTR * L}")
                e(f"buffer_load_dwordx4 {vr(PL + 4 * L)}, v{vPl if L < 4 else vPl4}, {srd(SWS)}, s{t} offen sc1")
            for N in range(3):
                e(f"s_add_u32 s{t}, s{sPc}, {4 * PSTR * N}")
                e(f"buffer_load_dword v{PL + 20 + N}, v{vPl9 if N < 2 else vPl9b}, {srd(SWS)}, s{t} offen sc1")

        def pcheck():
            e(f"v_max3_u32 v{vCs}, v{PL}, v{PL + 1}, v{PL + 2}")
            for i in range(10):
                e(f"v_max3_u32 v{vCs}, v{vCs}, v{PL + 3 + 2 * i}, v{PL + 4 + 2 * i}")
            e(f"v_cmp_eq_u32 vcc, -1, v{vCs}")
        e(f"v_mov_b32 v{PL + 23}, 0")
        reads, mf = [], []
        for s in range(5):
            for tile in range(9):
                fb = self.wo_reg(tile, s)
                for h in range(2 if s < 4 else 1):
                    row = (32 * s + 16 * h) * 288
                    if tile < 8:
                        reads.append(f"ds_read_b64_tr_b16 {self.rr(fb, 2 * h, 2)}, v{vT2} offset:{row + 64 * (tile >> 1) + 8 * (tile & 1)}")
                    else:
                        reads.append(f"ds_read_b64_tr_b16 {self.rr(fb, 2 * h, 2)}, v{vT1o} offset:{row + 256}")
                acc = vr(OA + 4 * tile)
                if s < 4:
                    mf.append((len(reads), f"v_mfma_f32_16x16x32_bf16 {acc}, {self.rr(fb, 0, 4)}, {vr(vSent)}, {acc if s else '0'}"))
                else:
                    mf.append((len(reads), f"v_mfma_f32_16x16x16_bf16 {acc}, {self.rr(fb, 0, 2)}, {vr(vSent, 2)}, {acc}"))
        mi = 0
        for i, l in enumerate(reads):
            if i == self.plpos:
                e.wait(vm=0)
                ploads()
            e(l)
            while mi < len(mf) and mf[mi][0] + 12 <= i + 1:
                e(mf[mi][1])
                mi += 1
        while mi < len(mf):
            e(mf[mi][1])
            mi += 1
        pcheck()
        e("s_cbranch_vccnz L_r4")
        e.label("L_r4_back")

        def body():
            ploads()
            e.wait(vm=0)
            pcheck()
        self.add_stub("L_r4", body)
        self.stamp("pok")
        e(f"v_mfma_f32_16x16x32_bf16 {vr(D + 4)}, {vr(vA9)}, {vr(PL + 20)}, 0")
        for L in range(5):
            e(f"v_mfma_f32_16x16x32_bf16 {vr(D)}, {vr(vAI)}, {vr(PL + 4 * L)}, {vr(D) if L else '0'}")
        e(f"s_or_b32 s{t}, s{sG}, s{sJ}\ns_or_b32 s{t}, s{t}, s{sW}\ns_cmp_eq_u32 s{t}, 0\ns_cbranch_scc0 L_ne")
        snap = e.snapshot()
        e(f"v_mov_b32 v{vCs}, s{sN}\ns_mov_b64 exec, 1")
        e(f"buffer_store_dword v{vCs}, off, {srd(SWS)}, 0 sc1")
        e("s_mov_b64 exec, -1")
        e.label("L_ne")
        e.restore(snap)
        self.gelu_pairs([D + 4, D, D + 2], [TM, TM + 2, TM + 4], scaled=True)
        e(f"v_cvt_pk_bf16_f32 v{D + 4}, v{D + 4}, v{D + 4}")
        e(f"v_cvt_pk_bf16_f32 v{D}, v{D}, v{D + 1}\nv_cvt_pk_bf16_f32 v{D + 1}, v{D + 2}, v{D + 3}")
        e(f"ds_write_b16 v{vFw9}, v{D + 4}\nds_write_b64 v{vFw}, {vr(D, 2)}")
        e(f"ds_read_b64 {vr(FB + 16, 2)}, v{vFr9}")
        for s in range(4):
            e(f"ds_read_b128 {vr(FB + 4 * s)}, v{vFr} offset:{64 * s}")
        M = []
        V = []
        zend = {}
        tend = {}
        n = 0
        for eps in range(9):
            n += 14
            tend[eps] = n
        order = ["H0", "H1", "H2", "H3", "H4", "H5", "Z0", "Z1", "Z2", "H6", "H7", "H8", "Z3", "Z4", "O0", "Z5", "Z6", "O1",
                 "Z7", "Z8", "O2", "O3", "O4"]
        oend = {}
        for it in order:
            k = int(it[1])
            if it[0] == "H":
                acc = vr(Z + 4 * k)
                M.append((f"v_mfma_f32_16x16x16_bf16 {acc}, {self.rr(self.wf_reg(k, 4), 0, 2)}, {vr(FB + 16, 2)}, {acc}", 0))
            elif it[0] == "Z":
                acc = vr(Z + 4 * k)
                for s in range(4):
                    fb = self.wf_reg(k, s)
                    M.append((f"v_mfma_f32_16x16x32_bf16 {acc}, {self.rr(fb, 0, 4)}, {vr(FB + 4 * s)}, {acc}", 0))
                zend[k] = len(M)
            else:
                for tile in range(9):
                    fb = self.wo_reg(tile, k)
                    acc = vr(OA + 4 * tile)
                    if k < 4:
                        M.append((f"v_mfma_f32_16x16x32_bf16 {acc}, {self.rr(fb, 0, 4)}, {vr(JP + 4 * k)}, {acc}", tend[2 * k + 1]))
                    else:
                        M.append((f"v_mfma_f32_16x16x16_bf16 {acc}, {self.rr(fb, 0, 2)}, {vr(JP + 16, 2)}, {acc}", tend[8]))
                    oend[tile] = len(M)
        for eps in range(9):
            z = Z + 4 * eps
            for q in range(4):
                V.append((f"v_exp_f32 v{z + q}, v{z + q}", 2, zend[eps] + (5 if eps == 0 else 3)))
            for q in range(4):
                V.append((f"v_fma_f32 v{z + q}, v{z + q}, -0.5, -0.5", 1, 0))
            for q in range(4):
                V.append((f"v_rcp_f32 v{z + q}, v{z + q}", 2, 0))
            V.append((f"v_cvt_pk_bf16_f32 v{JP + 2 * eps}, v{z}, v{z + 1}", 1, 0))
            V.append((f"v_cvt_pk_bf16_f32 v{JP + 2 * eps + 1}, v{z + 2}, v{z + 3}", 1, 0))
        fl = self.outflags
        for p in range(5):
            tiles = (2 * p, 2 * p + 1) if p < 4 else (8,)
            for i, tile in enumerate(tiles):
                a = OA + 4 * tile
                rdy = min(oend[tile] + 4, len(M))
                V.append((f"v_cvt_pk_bf16_f32 v{OP + 4 * p + 2 * i}, v{a}, v{a + 1}", 1, rdy))
                V.append((f"v_cvt_pk_bf16_f32 v{OP + 4 * p + 2 * i + 1}, v{a + 2}, v{a + 3}", 1, rdy))
            if p < 4:
                V.append((f"buffer_store_dwordx4 {vr(OP + 4 * p)}, v{vOut}, {srd(SOUT)}, 0 offen offset:{64 * p} {fl}", 1, 0))
            else:
                V.append((f"buffer_store_dwordx2 {vr(OP + 16, 2)}, v{vOut9}, {srd(SOUT)}, 0 offen {fl}", 1, 0))
        mi = vi = 0
        credit = 0.0
        while mi < len(M) or vi < len(V):
            m_ok = mi < len(M) and M[mi][1] <= vi
            v_ok = vi < len(V) and V[vi][2] <= mi
            if m_ok and (credit <= 0 or not v_ok):
                e(M[mi][0])
                mi += 1
                credit = min(credit, 0) + 2.7
            else:
                assert v_ok, (mi, vi)
                e(V[vi][0])
                credit -= V[vi][1]
                vi += 1

    def epilogue(self):
        e = self.e
        if self.stamps:
            self.stamp("issued")
            e.wait(vm=0)
            self.stamp("drained")
            e("s_memrealtime s[62:63]")
            for i in range(28):
                e(f"v_mov_b32 v{46 + i}, s{self.SLOTS[i]}")
            e(f"v_mov_b32 v74, s96\nv_mov_b32 v75, s62\nv_mov_b32 v76, s{sSpin}\nv_mov_b32 v77, 0")
            e(f"s_lshl_b32 s61, s2, 2\ns_add_u32 s61, s61, s{sW}\ns_lshl_b32 s61, s61, 7\ns_add_u32 s61, s61, {WS_DBG}")
            e("s_mov_b64 exec, 1")
            for i in range(8):
                e(f"buffer_store_dwordx4 {vr(46 + 4 * i)}, off, {srd(SWS)}, s61 offset:{16 * i}")
            self.mk_srd(SW1R, 20, 256)
            e("v_not_b32 v74, v74")
            e(f"buffer_atomic_umax v75, off, {srd(SW1R)}, 0\nbuffer_atomic_umax v74, off, {srd(SW1R)}, 0 offset:4")
            for i in range(1, min(self.nst, 15)):
                e(f"v_sub_u32 v{46 + i}, v{46 + i}, v46")
                e(f"buffer_atomic_umax v{46 + i}, off, {srd(SW1R)}, 0 offset:{4 + 4 * i}")
            e.raw("; STAMPS " + " ".join(self.stnames))
        e.label("L_exit")
        e("s_endpgm")

    def emit_stubs(self):
        e = self.e
        for name, body in self.stubs:
            e.label(name)
            e.forget()
            e("s_nop 7")
            body()
            e(f"s_add_u32 s{sSpin}, s{sSpin}, 1")
            e(f"s_cbranch_vccz {name}_back")
            e(f"s_cmp_lt_u32 s{sSpin}, {SPIN}\ns_cbranch_scc1 {name}\ns_branch {name}_back")

    def spare(self):
        e = self.e
        t = sT
        e.label("L_spare")
        e.forget()
        e.smem.append([("s", sN)])
        SWG, SGG = SWF, SWO
        self.mk_srd(SWG, 14, 41472)
        self.mk_srd(SGG, 10, 4608)
        e(f"s_mul_i32 s{t + 3}, s{sW}, 11264")
        for l in self.dma_w(SWG, 0):
            e(l)
        e(f"""
        v_and_b32 v46, 7, v{vLane}
        v_lshrrev_b32 v47, 4, v{vLane}
        v_mul_u32_u24 v48, 288, v46
        v_lshl_add_u32 v48, v47, 3, v48
        s_mul_i32 s{t}, s{sB}, 2304
        """)
        for s in range(4):
            for h in range(2):
                e(f"buffer_load_dwordx2 {vr(60 + 4 * s + 2 * h, 2)}, v48, {srd(SGG)}, s{t} offen offset:{64 * s + 32 * h}")
        e(f"buffer_load_dwordx2 {vr(76, 2)}, v48, {srd(SGG)}, s{t} offen offset:256")
        e(f"""
        v_lshrrev_b32 v49, 2, v{vLane}
        v_mul_u32_u24 v49, 288, v49
        v_and_b32 v50, 3, v{vLane}
        v_lshl_add_u32 v49, v50, 3, v49
        s_lshl_b32 s{t + 1}, s{sW}, 5
        v_add_u32 v49, s{t + 1}, v49
        v_mul_u32_u24 v51, 576, v46
        v_lshl_add_u32 v51, v47, 4, v51
        s_mul_i32 s{t + 2}, s{sQ}, 4608
        s_add_u32 s{t + 2}, s{t + 2}, {WS_GE}
        s_lshl_b32 s{t + 1}, s{sW}, 6
        s_add_u32 s{t + 2}, s{t + 2}, s{t + 1}
        s_mov_b32 s{t + 5}, s{sW}
        s_mul_i32 s{sN}, s{sN}, 1664525
        s_add_u32 s{sN}, s{sN}, 1013904223
        v_mov_b32 v52, s{sN}
        """)
        e.wait(vm=0)
        e("s_barrier")
        e.label("L_sp1")
        e.forget()
        for s in range(5):
            for h in range(2 if s < 4 else 1):
                e(f"ds_read_b64_tr_b16 {vr(80 + 4 * s + 2 * h, 2)}, v49 offset:{(32 * s + 16 * h) * 288}")
        for s in range(4):
            e(f"v_mfma_f32_16x16x32_bf16 v[100:103], {vr(80 + 4 * s)}, {vr(60 + 4 * s)}, {'v[100:103]' if s else '0'}")
        e("v_mfma_f32_16x16x16_bf16 v[100:103], v[96:97], v[76:77], v[100:103]")
        for q in range(4):
            e(f"v_mul_f32 v{104 + q}, {f32(S2)}, v{100 + q}")
        e(f"buffer_store_dwordx4 v[104:107], v51, {srd(SWS)}, s{t + 2} offen sc1")
        e(f"""
        v_add_u32 v49, 128, v49
        s_add_u32 s{t + 2}, s{t + 2}, 256
        s_add_u32 s{t + 5}, s{t + 5}, 4
        s_cmp_lt_u32 s{t + 5}, 9
        s_cbranch_scc1 L_sp1
        """)
        e.wait(vm=0)
        e("s_barrier")
        e(f"""
        s_cmp_eq_u32 s{sW}, 0
        s_cbranch_scc0 L_sp2
        s_add_u32 s{t}, s{sQ}, {252 + WS_FCL // 128}
        s_lshl_b32 s{t}, s{t}, 7
        s_mov_b64 exec, 1
        buffer_store_dword v52, off, {srd(SWS)}, s{t} sc1
        """)
        e.label("L_sp2")
        e("s_endpgm")

    def build(self):
        e = self.e
        e.raw(f"; @launch grid=(256,1,1) block=(256,1,1) lds={LDS_SIZE}")
        e.raw('.amdgcn_target "amdgcn-amd-amdhsa--gfx950"')
        e.raw(f".text\n.globl {KN}\n.p2align 8\n.type {KN},@function\n{KN}:")
        e(f"s_mov_b32 s{sSpin}, 0")
        self.prologue()
        self.setup()
        self.produce()
        self.conv1()
        self.transition()
        self.conv2()
        self.joint()
        self.epilogue()
        self.emit_stubs()
        self.spare()
        e.label("L_codeend")
        e.raw('.section .rodata,"a"\n.p2align 6')
        e.raw(f".amdhsa_kernel {KN}")
        e.raw("  .amdhsa_next_free_vgpr 512\n  .amdhsa_next_free_sgpr 102\n  .amdhsa_accum_offset 256\n"
              "  .amdhsa_group_segment_fixed_size 0\n  .amdhsa_kernarg_size 80\n  .amdhsa_user_sgpr_count 2\n"
              "  .amdhsa_user_sgpr_kernarg_segment_ptr 1\n  .amdhsa_system_sgpr_workgroup_id_x 1\n.end_amdhsa_kernel")
        return e.text()


if __name__ == "__main__":
    out = sys.argv[1]
    kw = eval("dict(" + (sys.argv[2] if len(sys.argv) > 2 else "") + ")")
    g = Gen(**kw)
    open(out, "w").write(g.build())
    print("written", out, "nops", g.e.nops, "lines", len(g.e.L))
```

```python
import math
import struct
import sys
from emit import Em, weave

KN = "standalone__seq2seq_rnn_t_joint__speech_kernel"


def f32(x):
    return "0x%08x" % struct.unpack("<I", struct.pack("<f", x))[0]


def vr(b, n=4):
    return f"v[{b}:{b + n - 1}]" if n > 1 else f"v{b}"


def ar(b, n=4):
    return f"a[{b}:{b + n - 1}]" if n > 1 else f"a{b}"


WS_FW2 = 0x1000
WS_FCL = 0x10000
WS_GE = 0x20000
WS_W1 = 0x30000
WS_W2 = 0x180000
WS_P = 0x300000
WS_DBG = 0x1000000
PSTR = 24576
BIG = 0x80000000
L_X = 0
L_WF = 0
L_WO = 45056
L_RED = 110592
L_H = 155648
L_FS = L_RED + 20480
LDS_SIZE = 161792
SPIN = 20000

SX, SW1R, SWS, SWF, SWO, SOUT, SW2R = 24, 28, 32, 36, 40, 44, 48
sQ, sJ, sG, sB, sGi, sW, sN = 54, 55, 56, 57, 58, 59, 60
sT = 61
sW1, sW2, sP, sPc = 70, 71, 72, 73
sMask = 74
sSpin = 80
sGeO = 81
sStamp = 82
sC = 98
sIS = 100

(vT1o, vLane, vL16, vL16b, vChk, vXa0, vXa1, vXa2, vRedW, vRedR, vHw, vHr, vHr9, vN9W, vN9R, vRedL, vPst, vPst9,
 vT1, vT2, vPl, vPl4, vPl9, vPl9b, vFw, vFw9, vFr, vFr9, vOut, vOut9, vGe, vFlA, vFlC, vCs) = range(34)
vAI, vA9, vSent = 34, 38, 42
RING, NSLOT = 46, 24
WBUF = 142
WCHK = 202
VWF = 206
A_W2, A_ACC, A_WF = 0, 144, 144

C1 = 2.0 * math.sqrt(2.0 / math.pi) * math.log2(math.e)
C2 = C1 * 0.044715
S2 = 2.0 * math.log2(math.e)


def srd(i):
    return f"s[{i}:{i + 3}]"


class Gen:
    def __init__(self, stamps=False, nx=(27, 27, 27, 27), plpos=40, outflags="", dbgwg=None, hold=0):
        self.e = Em()
        self.stamps = stamps
        self.nx = nx
        self.plpos = plpos
        self.outflags = outflags
        self.dbgwg = dbgwg
        self.hold = hold
        self.stubs = []
        self.nst = 0
        self.stnames = []

    SLOTS = list(range(82, 94)) + list(range(4, 20))

    def stamp(self, name="", lvl=1):
        if self.stamps >= lvl:
            i = self.SLOTS[self.nst]
            self.nst += 1
            self.stnames.append(name)
            self.e("s_memtime s[94:95]")
            self.e.wait(lg=0)
            self.e(f"s_mov_b32 s{i}, s94")

    def mk_srd(self, d, base, size):
        self.e(f"s_mov_b32 s{d}, s{base}\ns_mov_b32 s{d + 1}, s{base + 1}\ns_mov_b32 s{d + 2}, {size}\ns_mov_b32 s{d + 3}, 0x20000")

    def gelu_pairs(self, pairs, tmp, scaled=False):
        e = self.e
        for x, t in zip(pairs, tmp):
            e(f"v_pk_mul_f32 {vr(t, 2)}, {vr(x, 2)}, {vr(x, 2)}")
        for x, t in zip(pairs, tmp):
            e(f"v_pk_fma_f32 {vr(t, 2)}, {vr(t, 2)}, s[{sC}:{sC + 1}], s[{sC}:{sC + 1}] op_sel:[0,0,1] op_sel_hi:[1,0,1]")
        for x, t in zip(pairs, tmp):
            e(f"v_pk_mul_f32 {vr(t, 2)}, {vr(t, 2)}, {vr(x, 2)}")
        for x, t in zip(pairs, tmp):
            e(f"v_exp_f32 v{t}, v{t}\nv_exp_f32 v{t + 1}, v{t + 1}")
        for x, t in zip(pairs, tmp):
            if scaled:
                e(f"v_pk_fma_f32 {vr(t, 2)}, {vr(t, 2)}, s[{sIS}:{sIS + 1}], s[{sIS}:{sIS + 1}]")
            else:
                e(f"v_pk_add_f32 {vr(t, 2)}, {vr(t, 2)}, 1.0 op_sel_hi:[1,0]")
        for x, t in zip(pairs, tmp):
            e(f"v_rcp_f32 v{t}, v{t}\nv_rcp_f32 v{t + 1}, v{t + 1}")
        for x, t in zip(pairs, tmp):
            e(f"v_pk_mul_f32 {vr(x, 2)}, {vr(x, 2)}, {vr(t, 2)}")

    def prologue(self):
        e = self.e
        e("s_cmp_ge_u32 s2, 256\ns_cbranch_scc1 L_exit")
        e("s_load_dwordx16 s[4:19], s[0:1], 0\ns_load_dwordx4 s[20:23], s[0:1], 64")
        if self.stamps or self.hold:
            e("s_memrealtime s[96:97]")
        e("s_getpc_b64 s[52:53]")
        e.label("L_pc")
        e("v_lshlrev_b32 v1, 7, v0")
        e("v_min_u32 v1, L_codeend-L_pc-4, v1")
        e("global_load_dword v255, v1, s[52:53]")
        e(f"v_lshrrev_b32 v2, 6, v0\nv_and_b32 v{vLane}, 63, v0")
        e(f"v_readfirstlane_b32 s{sW}, v2")
        t = sT
        e(f"""
        s_and_b32 s{t}, s2, 1
        s_lshl_b32 s{t}, s{t}, 5
        s_lshr_b32 s{t + 1}, s2, 3
        s_add_u32 s{t}, s{t}, s{t + 1}
        s_bfe_u32 s{sQ}, s2, 0x20001
        s_mul_i32 s{sJ}, s{t}, 37
        s_lshr_b32 s{sJ}, s{sJ}, 8
        s_mul_i32 s{t + 1}, s{sJ}, 7
        s_sub_u32 s{t + 2}, s{t}, s{t + 1}
        s_mul_i32 s{sG}, s{sQ}, 7
        s_add_u32 s{sG}, s{sG}, s{t + 2}
        s_lshr_b32 s{sB}, s{sQ}, 1
        s_mul_i32 s{t + 1}, s{sB}, 14
        s_sub_u32 s{sGi}, s{sG}, s{t + 1}
        s_mul_i32 s{t + 3}, s{sB}, 1152000
        """)
        e(f"v_lshlrev_b32 v{vL16}, 4, v{vLane}")
        e(f"v_lshrrev_b32 v46, 1, v{vLane}\nv_and_b32 v47, 1, v{vLane}\nv_lshlrev_b32 v47, 4, v47")
        e.wait(lg=0)
        self.stamp("karg")
        e(f"s_load_dword s{sN}, s[22:23], 0")
        self.mk_srd(SWS, 22, 0x10000000)
        e(f"s_cmp_eq_u32 s{sJ}, 9\ns_cbranch_scc1 L_spare")
        self.mk_srd(SW1R, 6, 1285632)
        self.mk_srd(SW2R, 8, 1285632)
        e(f"s_add_u32 s{SX}, s4, s{t + 3}\ns_addc_u32 s{SX + 1}, s5, 0\ns_mov_b32 s{SX + 2}, 1152000\ns_mov_b32 s{SX + 3}, 0x20000")
        e(f"s_cmp_eq_u32 s{sW}, 0\ns_cbranch_scc0 L_g1")
        e("v_mul_u32_u24 v48, 288, v46\nv_add_u32 v48, v48, v47")
        e(f"""
        s_lshl_b32 s{t + 3}, s{sQ}, 5
        s_add_u32 s{t + 4}, s{t + 3}, {160 - 288 * 16}
        s_mul_i32 s{t + 5}, s{sQ}, 1152
        s_add_u32 s{t + 5}, s{t + 5}, {128 - 288 * 31}
        s_mul_i32 s{t + 2}, s{t + 2}, 5
        s_lshl_b32 s{t + 6}, s{sJ}, 5
        s_mov_b32 m0, {L_RED}
        """)
        for i in range(5):
            e(f"""
            s_cmp_lt_u32 s{t + 2}, 31
            s_cselect_b32 s{t}, s{t + 4}, s{t + 5}
            s_cmp_lt_u32 s{t + 2}, 16
            s_cselect_b32 s{t}, s{t + 3}, s{t}
            s_mul_i32 s{t + 1}, s{t + 2}, 288
            s_add_u32 s{t}, s{t}, s{t + 1}
            s_mul_i32 s{t}, s{t}, 288
            s_add_u32 s{t}, s{t}, s{t + 6}
            buffer_load_dwordx4 v48, {srd(SW1R)}, s{t} offen lds
            """)
            if i < 4:
                e(f"s_add_u32 m0, m0, 1024\ns_add_u32 s{t + 2}, s{t + 2}, 1")
        e("s_branch L_g2")
        e.label("L_g1")
        e(f"s_cmp_eq_u32 s{sW}, 1\ns_cbranch_scc0 L_g2\ns_cmp_lt_u32 s{sG}, 24\ns_cbranch_scc0 L_g2")
        e(f"""
        v_and_b32 v48, 15, v46
        v_mul_u32_u24 v48, 288, v48
        v_lshrrev_b32 v49, 4, v46
        v_mul_u32_u24 v49, 41472, v49
        v_add3_u32 v48, v48, v49, v47
        s_mul_i32 s{t + 3}, s{sG}, 43
        s_lshr_b32 s{t + 3}, s{t + 3}, 8
        s_mul_i32 s{t + 2}, s{t + 3}, 6
        s_sub_u32 s{t + 2}, s{sG}, s{t + 2}
        s_mul_i32 s{t + 2}, s{t + 2}, 6
        s_mul_i32 s{t + 6}, s{sJ}, 4608
        s_mov_b32 m0, {L_RED + 5120}
        """)
        for i in range(6):
            e(f"""
            s_sub_u32 s{t}, s{t + 2}, 4
            s_lshr_b32 s{t}, s{t}, 1
            s_lshl_b32 s{t + 1}, s{t + 3}, 6
            s_add_u32 s{t + 1}, s{t + 1}, {32 * (i & 1)}
            s_lshl_b32 s{t + 4}, s{t + 3}, 2
            s_add_u32 s{t + 4}, s{t + 4}, s{t + 2}
            s_cmp_lt_u32 s{t + 2}, 4
            s_cselect_b32 s{t}, s{t + 4}, s{t}
            s_cselect_b32 s{t + 1}, 256, s{t + 1}
            s_mul_i32 s{t}, s{t}, 82944
            s_add_u32 s{t}, s{t}, s{t + 1}
            s_add_u32 s{t}, s{t}, s{t + 6}
            buffer_load_dwordx4 v48, {srd(SW2R)}, s{t} offen lds
            """)
            if i < 5:
                e(f"s_add_u32 m0, m0, 1024\ns_add_u32 s{t + 2}, s{t + 2}, 1")
        e.label("L_g2")
        e.forget()
        e.smem.append([("s", sN)])
        nx = self.nx
        assert sum(nx) == 108
        st = [sum(nx[:i]) * 1024 for i in range(5)]
        e(f"""
        s_mov_b32 s{t + 1}, {st[1]}
        s_cmp_eq_u32 s{sW}, 1
        s_cselect_b32 s{t}, {st[1]}, {st[0]}
        s_cselect_b32 s{t + 1}, {st[2]}, s{t + 1}
        s_cmp_eq_u32 s{sW}, 2
        s_cselect_b32 s{t}, {st[2]}, s{t}
        s_cselect_b32 s{t + 1}, {st[3]}, s{t + 1}
        s_cmp_eq_u32 s{sW}, 3
        s_cselect_b32 s{t}, {st[3]}, s{t}
        s_cselect_b32 s{t + 1}, {st[4]}, s{t + 1}
        s_mul_i32 s{t + 2}, s{sGi}, 82944
        s_sub_u32 s{t + 2}, s{t + 2}, 13056
        s_add_u32 s{t + 2}, s{t + 2}, s{t}
        s_mov_b32 m0, s{t}
        v_add_u32 v50, s{t + 2}, v{vL16}
        """)
        if min(nx) == 0:
            e(f"s_cmp_eq_u32 s{t}, s{t + 1}\ns_cbranch_scc1 L_xdone")
        e.label("L_xl")
        e(f"""
        buffer_load_dwordx4 v50, {srd(SX)}, 0 offen lds
        s_add_u32 m0, m0, 1024
        v_add_u32 v50, 1024, v50
        s_cmp_lt_u32 m0, s{t + 1}
        s_cbranch_scc1 L_xl
        """)
        e.label("L_xdone")
        e.vm = []

    def setup(self):
        e = self.e
        t = sT
        m, g, a, b, c = 46, 47, 48, 49, 50
        self.mk_srd(SWF, 12, 41472)
        self.mk_srd(SWO, 16, 41472)
        self.mk_srd(SOUT, 18, 4608000)
        e(f"""
        v_and_b32 v{m}, 15, v{vLane}
        v_lshrrev_b32 v{g}, 4, v{vLane}
        v_add_u32 v{vL16b}, 4096, v{vL16}
        v_lshlrev_b32 v{vChk}, 2, v{vLane}
        v_add_u32 v{vChk}, 5120, v{vChk}
        v_mul_u32_u24 v{a}, 6336, v{m}
        v_lshl_add_u32 v{a}, v{g}, 4, v{a}
        s_lshl_b32 s{t}, s{sW}, 6
        s_add_u32 s{t}, s{t}, {L_X + 96}
        v_add_u32 v{vXa0}, s{t}, v{a}
        v_add_u32 v{vXa1}, 320, v{vXa0}
        s_mul_i32 s{t}, s{sW}, 2304
        s_add_u32 s{t}, s{t}, {L_X + 96 + 256}
        v_add_u32 v{vXa2}, s{t}, v{a}
        v_add_u32 v{vRedL}, {L_RED}, v{vL16}
        s_mul_i32 s{t}, s{sW}, 11264
        v_add_u32 v{vRedW}, s{t}, v{vRedL}
        s_mul_i32 s{t + 1}, s{sW}, 3
        s_min_u32 s{t + 1}, s{t + 1}, 8
        s_lshl_b32 s{t}, s{t + 1}, 10
        v_add_u32 v{vRedR}, s{t}, v{vRedL}
        s_mul_i32 s{t}, s{sW}, 5120
        v_add_u32 v{vN9W}, s{t}, v{vRedL}
        s_lshl_b32 s{t}, s{sW}, 10
        v_add_u32 v{vN9R}, s{t}, v{vRedL}
        v_mul_u32_u24 v{a}, 11, v{m}
        v_add_u32 v{a}, s{t + 1}, v{a}
        v_lshlrev_b32 v{b}, 5, v{a}
        v_lshl_add_u32 v{b}, v{g}, 3, v{b}
        v_add_u32 v{vHw}, {L_H}, v{b}
        s_mul_i32 s{t}, s{sGi}, 144
        s_sub_u32 s{t}, s{t}, 15
        s_movk_i32 s{t + 2}, 2000
        v_add_u32 v{a}, s{t}, v{a}
        v_cmp_gt_u32_e64 s[{sMask}:{sMask + 1}], s{t + 2}, v{a}
        v_add_u32 v{a}, 1, v{a}
        v_cmp_gt_u32_e64 s[{sMask + 2}:{sMask + 3}], s{t + 2}, v{a}
        v_add_u32 v{a}, 1, v{a}
        v_cmp_gt_u32_e64 s[{sMask + 4}:{sMask + 5}], s{t + 2}, v{a}
        v_mul_u32_u24 v{a}, 320, v{m}
        v_lshl_add_u32 v{a}, v{g}, 4, v{a}
        v_add_u32 v{vHr}, {L_H}, v{a}
        s_lshl_b32 s{t}, s{sW}, 8
        v_add_u32 v{vHr9}, s{t}, v{vHr}
        v_lshlrev_b32 v{a}, 6, v{m}
        v_lshl_add_u32 v{vPst}, v{g}, 4, v{a}
        v_lshrrev_b32 v{vPst9}, 1, v{vPst}
        v_add_u32 v{vPst9}, 20480, v{vPst9}
        v_lshrrev_b32 v{a}, 2, v{vLane}
        v_mul_u32_u24 v{a}, 288, v{a}
        v_and_b32 v{b}, 3, v{vLane}
        v_lshl_add_u32 v{vT1}, v{b}, 3, v{a}
        v_add_u32 v{vT1o}, {L_WO}, v{vT1}
        v_lshl_add_u32 v{vT2}, v{b}, 3, v{vT1o}
        """)
        e(f"""
        s_mul_i32 s{t}, s{sJ}, 28
        s_mul_i32 s{t + 1}, s{sW}, 7
        s_add_u32 s{t}, s{t}, s{t + 1}
        s_mul_i32 s{sW1}, s{t}, 5376
        s_add_u32 s{sW1}, s{sW1}, {WS_W1}
        s_lshl_b32 s{t}, s{sJ}, 2
        s_add_u32 s{t + 8}, s{t}, s{sW}
        s_mul_i32 s{sW2}, s{t + 8}, 36864
        s_add_u32 s{sW2}, s{sW2}, {WS_W2}
        s_mul_i32 s{sPc}, s{sG}, {9 * PSTR}
        s_add_u32 s{sPc}, s{sPc}, {WS_P}
        s_mul_i32 s{sP}, s{sJ}, {PSTR}
        s_add_u32 s{sP}, s{sP}, s{sPc}
        s_mul_i32 s{sGeO}, s{sQ}, 4608
        s_add_u32 s{sGeO}, s{sGeO}, {WS_GE}
        s_mov_b32 s{sC}, {f32(-C2)}
        s_mov_b32 s{sC + 1}, {f32(-C1)}
        s_mov_b32 s{sIS}, {f32(1.0 / S2)}
        s_mov_b32 s{sIS + 1}, {f32(1.0 / S2)}
        """)
        e(f"""
        s_mul_i32 s{t}, s{t + 8}, 37
        s_lshr_b32 s{t}, s{t}, 8
        s_mul_i32 s{t + 1}, s{t}, 7
        s_sub_u32 s{t + 1}, s{t + 8}, s{t + 1}
        s_lshl_b32 s{t + 1}, s{t + 1}, 1
        s_cmp_eq_u32 s{t + 8}, 35
        s_cselect_b32 s{t}, 0, s{t}
        s_cselect_b32 s{t + 1}, 14, s{t + 1}
        s_cselect_b32 s{t + 2}, 512, 32
        s_cselect_b32 s{t + 3}, 1, 5
        s_lshl_b32 s{t + 4}, s{t}, 9
        s_lshl_b32 s{t + 5}, s{t + 1}, 5
        s_add_u32 s{t + 4}, s{t + 4}, s{t + 5}
        s_mul_i32 s{t + 5}, s{t + 1}, 5
        s_add_u32 s{t + 5}, s{t + 5}, s{t}
        s_mul_i32 s{t + 6}, s{sGi}, 72
        s_add_u32 s{t + 5}, s{t + 5}, s{t + 6}
        s_lshl_b32 s{t + 6}, s{t + 2}, 1
        s_lshl_b32 s{t + 7}, s{t + 4}, 1
        """)
        e(f"""
        v_lshrrev_b32 v{a}, 5, v{vLane}
        v_mul_u32_u24 v{a}, {PSTR}, v{a}
        v_bfe_u32 v{b}, v{vLane}, 3, 2
        v_mul_u32_u24 v{b}, 5120, v{b}
        v_add3_u32 v{a}, v{a}, v{b}, s{t + 7}
        v_bfe_u32 v{b}, v{vLane}, 2, 1
        v_mad_u32_u24 v{a}, v{b}, s{t + 6}, v{a}
        v_and_b32 v{c}, 3, v{vLane}
        v_lshl_add_u32 v{vPl}, v{c}, 4, v{a}
        v_mov_b32 v51, {BIG}
        v_cmp_gt_u32 vcc, 32, v{vLane}
        v_cndmask_b32 v{vPl4}, v51, v{vPl}, vcc
        v_mul_u32_u24 v{b}, 288, v{b}
        v_lshl_add_u32 v{b}, v{c}, 4, v{b}
        v_lshrrev_b32 v{a}, 5, v{vLane}
        v_lshl_add_u32 v{b}, v{a}, 7, v{b}
        v_bfe_u32 v{a}, v{vLane}, 4, 1
        v_lshl_add_u32 v{b}, v{a}, 3, v{b}
        v_bfe_u32 v52, v{vLane}, 3, 1
        v_lshl_add_u32 v{b}, v52, 6, v{b}
        s_mul_i32 s{t}, s{sW}, 640
        s_add_u32 s{t}, s{t}, {L_FS}
        v_add_u32 v{vFw}, s{t}, v{b}
        v_and_b32 v53, 7, v{vLane}
        v_mul_u32_u24 v{a}, {PSTR}, v{g}
        v_mad_u32_u24 v{a}, v52, s{t + 2}, v{a}
        v_lshl_add_u32 v{a}, v53, 2, v{a}
        s_add_u32 s{t + 4}, s{t + 4}, 20480
        v_add_u32 v{vPl9}, s{t + 4}, v{a}
        v_cmp_gt_u32_e64 s[{t + 7}:{t + 8}], 16, v{vLane}
        v_mul_u32_u24 v{a}, 288, v52
        v_add_u32 v{a}, s{t}, v{a}
        v_cndmask_b32_e64 v{vPl9b}, v51, v{vPl9}, s[{t + 7}:{t + 8}]
        v_lshl_add_u32 v{vFr}, v{g}, 4, v{a}
        v_add_u32 v{a}, 256, v{a}
        v_lshl_add_u32 v{vFr9}, v{g}, 3, v{a}
        v_lshl_add_u32 v{a}, v53, 2, v{a}
        v_lshl_add_u32 v{a}, v{g}, 1, v{a}
        s_add_u32 s{t}, s{t}, 512
        v_lshl_add_u32 v{b}, v{vLane}, 1, s{t}
        v_cndmask_b32 v{vFw9}, v{b}, v{a}, vcc
        v_mul_u32_u24 v{a}, 576, v53
        v_lshl_add_u32 v{vGe}, v{g}, 4, v{a}
        v_mov_b32 v{a}, s{t + 5}
        v_mad_u32_u24 v{a}, v52, s{t + 3}, v{a}
        v_cmp_gt_u32 vcc, 1000, v{a}
        s_mul_i32 s{t}, s{sB}, 1000
        v_add_u32 v{a}, s{t}, v{a}
        v_lshl_add_u32 v{a}, v{a}, 3, v53
        v_mul_u32_u24 v{a}, 288, v{a}
        v_cndmask_b32 v{a}, v51, v{a}, vcc
        v_lshl_add_u32 v{vOut}, v{g}, 4, v{a}
        v_add_u32 v{a}, 256, v{a}
        v_lshl_add_u32 v{vOut9}, v{g}, 3, v{a}
        """)
        e(f"""
        s_mul_i32 s{t}, s{sJ}, 24
        s_mul_i32 s{t + 1}, s{sW}, 6
        s_add_u32 s{t}, s{t}, s{t + 1}
        s_add_u32 s{t}, s{t}, {WS_FW2 // 128}
        v_min_u32 v{a}, 5, v{vLane}
        v_add_lshl_u32 v{vFlA}, v{a}, s{t}, 7
        s_mul_i32 s{t}, s{sG}, 9
        v_add_u32 v{a}, s{t}, v{vLane}
        v_add_u32 v{b}, 243, v{vLane}
        v_min_u32 v{b}, 255, v{b}
        v_cmp_gt_u32 vcc, 9, v{vLane}
        s_movk_i32 s{t}, {WS_FCL // 128}
        v_cndmask_b32 v{a}, v{b}, v{a}, vcc
        v_add_lshl_u32 v{vFlC}, v{a}, s{t}, 7
        """)
        e(f"""
        v_and_b32 v{a}, 1, v{g}
        v_lshlrev_b32 v{a}, 3, v{a}
        v_sub_u32 v{a}, v{m}, v{a}
        v_and_b32 v{b}, 1, v{a}
        v_lshlrev_b32 v{b}, 4, v{b}
        v_mov_b32 v{c}, 0x3f80
        v_lshlrev_b32 v{b}, v{b}, v{c}
        v_lshrrev_b32 v{a}, 1, v{a}
        """)
        for q in range(4):
            e(f"v_cmp_eq_u32 vcc, {q}, v{a}\nv_mov_b32 v{vSent + q}, -1\nv_cndmask_b32 v{vAI + q}, 0, v{b}, vcc")
        e(f"""
        v_cmp_eq_u32 vcc, 0, v{m}
        v_lshlrev_b32 v{b}, 16, v{c}
        v_cndmask_b32 v{vA9}, 0, v{c}, vcc
        v_cmp_eq_u32 vcc, 4, v{m}
        v_cndmask_b32 v{vA9}, v{vA9}, v{b}, vcc
        v_mov_b32 v{vA9 + 1}, v{vA9}
        v_mov_b32 v{vA9 + 2}, v{vA9}
        v_mov_b32 v{vA9 + 3}, v{vA9}
        """)
        e(f"v_lshlrev_b32 v{a}, 8, v{g}\nv_lshl_add_u32 v{a}, v{m}, 3, v{a}\nv_add_u32 v54, {L_RED}, v{a}")
        e(f"s_mul_i32 s{sN}, s{sN}, 1664525\ns_add_u32 s{sN}, s{sN}, 1013904223")

    def checksum(self, base):
        L = []
        for i in range(10):
            prev = f"s{sN}" if i == 0 else f"v{vCs}"
            L.append(f"v_add3_u32 v{vCs}, v{base + 2 * i}, v{base + 2 * i + 1}, {prev}")
        return L

    def produce(self):
        e = self.e
        t = sT
        R = 56
        e(f"s_cmp_eq_u32 s{sW}, 0\ns_cbranch_scc0 L_p1")
        e(f"s_mul_i32 s{t}, s{sJ}, 28\ns_add_u32 s{t}, s{t}, s{sG}\ns_mul_i32 s{t}, s{t}, 5376\ns_add_u32 s{t}, s{t}, {WS_W1}")
        e.wait(vm=self.nx[0])
        for i in range(5):
            for h in range(2):
                e(f"ds_read_b64_tr_b16 {vr(R + 4 * i + 2 * h, 2)}, v54 offset:{1024 * i + 128 * h}")
        cs = self.checksum(R)
        for i in range(5):
            a, o = (vL16, 1024 * i) if i < 4 else (vL16b, 0)
            e(f"buffer_store_dwordx4 {vr(R + 4 * i)}, v{a}, {srd(SWS)}, s{t} offen offset:{o} sc1")
            e(cs[2 * i])
            e(cs[2 * i + 1])
        e(f"buffer_store_dword v{vCs}, v{vChk}, {srd(SWS)}, s{t} offen sc1")
        e("s_branch L_p2")
        e.label("L_p1")
        e.forget()
        e(f"s_cmp_eq_u32 s{sW}, 1\ns_cbranch_scc0 L_p2\ns_cmp_lt_u32 s{sG}, 24\ns_cbranch_scc0 L_p2")
        e(f"""
        s_mul_i32 s{t}, s{sJ}, 24
        s_add_u32 s{t + 1}, s{t}, s{sG}
        s_mul_i32 s{t}, s{t + 1}, 6144
        s_add_u32 s{t}, s{t}, {WS_W2}
        s_lshl_b32 s{t + 1}, s{t + 1}, 7
        s_add_u32 s{t + 1}, s{t + 1}, {WS_FW2}
        v_mov_b32 v55, s{sN}
        """)
        e.wait(vm=self.nx[1])
        for i in range(6):
            for h in range(2):
                e(f"ds_read_b64_tr_b16 {vr(R + 4 * i + 2 * h, 2)}, v54 offset:{5120 + 1024 * i + 128 * h}")
        for i in range(6):
            a, o = (vL16, 1024 * i) if i < 4 else (vL16b, 1024 * (i - 4))
            e(f"buffer_store_dwordx4 {vr(R + 4 * i)}, v{a}, {srd(SWS)}, s{t} offen offset:{o} sc1")
        e.wait(vm=0)
        e("s_mov_b64 exec, 1")
        e(f"buffer_store_dword v55, off, {srd(SWS)}, s{t + 1} sc1")
        e("s_mov_b64 exec, -1")
        e.label("L_p2")
        e.forget()

    def w1_loads(self, c, soff):
        b = WBUF + 20 * (c % 3)
        L = []
        for i in range(5):
            a, o = (vL16, 1024 * i) if i < 4 else (vL16b, 0)
            L.append(f"buffer_load_dwordx4 {vr(b + 4 * i)}, v{a}, {srd(SWS)}, s{soff} offen offset:{o} sc1")
        L.append(f"buffer_load_dword v{WCHK + c % 3}, v{vChk}, {srd(SWS)}, s{soff} offen sc1")
        return L

    def add_stub(self, name, body):
        self.stubs.append((name, body))

    def w1_check(self, c):
        e = self.e
        e(f"v_cmp_ne_u32 vcc, v{vCs}, v{WCHK + c % 3}")
        e(f"s_cbranch_vccnz L_r1_{c}")
        e.label(f"L_r1_{c}_back")

        def body():
            e(f"s_add_u32 s{sT + 8}, s{sW1}, {5376 * c}")
            for l in self.w1_loads(c, sT + 8):
                e(l)
            e.wait(vm=0)
            for l in self.checksum(WBUF + 20 * (c % 3)):
                e(l)
            e(f"v_cmp_ne_u32 vcc, v{vCs}, v{WCHK + c % 3}")
        self.add_stub(f"L_r1_{c}", body)

    def flag_check(self, name, vaddr, vdata):
        e = self.e
        e(f"v_cmp_ne_u32 vcc, s{sN}, v{vdata}")
        e(f"s_cbranch_vccnz {name}")
        e.label(f"{name}_back")

        def body():
            e(f"buffer_load_dword v{vdata}, v{vaddr}, {srd(SWS)}, 0 offen sc1")
            e.wait(vm=0)
            e(f"v_cmp_ne_u32 vcc, s{sN}, v{vdata}")
        self.add_stub(name, body)

    def conv1(self):
        e = self.e
        t = sT
        e.wait(vm=0)
        self.stamp("xland")
        e(f"s_add_u32 s{t}, s{sW1}, 5376")
        for l in self.w1_loads(0, sW1) + self.w1_loads(1, t):
            e(l)
        e("s_barrier")
        seq = [(s, r) for s in range(31) for r in range(11)]
        seq += [(s, r) for r in range(11) for s in range(31, 35)]

        def frag(s, r):
            if s < 16:
                return (0, r + s)
            if s < 31:
                return (1, r + s - 16)
            return (2, r + s - 31)
        first, last = {}, {}
        for i, (s, r) in enumerate(seq):
            f = frag(s, r)
            first.setdefault(f, i)
            last[f] = i
        order = sorted(first, key=lambda f: first[f])
        free = [(-1, k) for k in range(NSLOT)]
        slot = {}
        fill = []
        LEAD = 26
        for n, f in enumerate(order):
            free.sort()
            avail, k = free.pop(0)
            slot[f] = k
            free.append((last[f], k))
            pos = max(avail, first[f] - LEAD)
            if f[0] > 0 and f[1] <= 10:
                pos = max(avail, first[(f[0], 0)] - 70 + 5 * f[1])
            if n < 13:
                pos = -1
            fill.append((pos, 1, f"ds_read_b128 {vr(RING + 4 * k)}, v{vXa0 + f[0]} offset:{576 * f[1]}", first[f]))
        for l in self.checksum(WBUF):
            fill.append((-1, 1, l))
        fill.append((-1, 1, lambda: self.w1_check(0)))
        fill.append((-1, 1, lambda: self.stamp("c0ok")))
        self.clr_tok = None
        for c in range(7):
            base = 55 * c
            if c + 2 < 7:
                fill.append((base, 0, f"s_add_u32 s{t}, s{sW1}, {5376 * (c + 2)}"))
                for k, l in enumerate(self.w1_loads(c + 2, t)):
                    fill.append((base + 2 * k, 1, l))
            if c < 6:
                def clr(c=c):
                    a, o = (vL16, 1024 * c) if c < 4 else (vL16b, 1024 * (c - 4))
                    self.clr_tok = e(f"buffer_store_dwordx4 {vr(vSent)}, v{a}, {srd(SWS)}, s{t + 1} offen offset:{o} sc1")
                if c == 0:
                    fill.append((base + 12, 0, f"s_mul_i32 s{t + 1}, s{sW}, 6144\ns_add_u32 s{t + 1}, s{t + 1}, s{sP}"))
                fill.append((base + 13, 1, clr))
                for k, l in enumerate(self.checksum(WBUF + 20 * ((c + 1) % 3))):
                    fill.append((base + 40 + k, 1, l))
                fill.append((base + 52, 1, (lambda c=c: self.w1_check(c + 1)), base + 55))
                fill.append((base + 53, 0, (lambda c=c: self.stamp(f"c{c + 1}ok", 2))))
        fill.append((20, 1, f"buffer_load_dword v205, v{vFlA}, {srd(SWS)}, 0 offen sc1"))
        fill.append((68, 1, lambda: self.flag_check("L_r2", vFlA, 205)))
        pos = 70
        for p in range(36):
            if p % 4 == 0:
                fill.append((pos, 0, f"s_add_u32 s{t + 2}, s{sW2}, {1024 * p}"))
            fill.append((pos, 1, f"buffer_load_dwordx4 {ar(A_W2 + 4 * p)}, v{vL16}, {srd(SWS)}, s{t + 2} offen offset:{1024 * (p % 4)} sc1"))
            pos += 7
        for r in range(11):
            fill.append((341 + 4 * r + 3 + 5, 1, f"ds_write_b128 v{vRedW}, {ar(A_ACC + 4 * r)} offset:{1024 * r}"))
        mf = []
        for s, r in seq:
            w = WBUF + 20 * ((s // 5) % 3) + 4 * (s % 5)
            acc = ar(A_ACC + 4 * r)
            mf.append(f"v_mfma_f32_16x16x32_bf16 {acc}, {vr(w)}, {vr(RING + 4 * slot[frag(s, r)])}, {acc if s else '0'}")
        weave(e, mf, fill)

    def dma_w(self, s, ldsbase):
        t = sT
        L = []
        for k in range(11):
            pre = ""
            if k % 4 == 0:
                pre = f"s_add_u32 s{t + 4}, s{t + 3}, {1024 * k}\ns_add_u32 m0, s{t + 3}, {ldsbase + 1024 * k}\n"
            L.append(pre + f"buffer_load_dwordx4 v{vL16}, {srd(s)}, s{t + 4} offen offset:{1024 * (k % 4)} lds")
        return L

    def transition(self):
        e = self.e
        t = sT
        self.stamp("c1end", 2)
        e.wait_tok(self.clr_tok)
        e.wait(lg=0)
        e("s_barrier")
        self.stamp("B2")
        R = RING
        for k in range(3):
            for s in range(4):
                e(f"ds_read_b128 {vr(R + 16 * k + 4 * s)}, v{vRedR} offset:{11264 * s + 1024 * k}")
        e(f"""
        s_mul_i32 s{t}, s{sG}, 9
        s_add_u32 s{t}, s{t}, s{sJ}
        s_lshl_b32 s{t}, s{t}, 7
        s_add_u32 s{t}, s{t}, {WS_FCL}
        s_mul_i32 s{t + 3}, s{sW}, 11264
        v_mov_b32 v{vCs}, s{sN}
        s_cmp_eq_u32 s{sW}, 0
        s_cbranch_scc0 L_nf
        s_mov_b64 exec, 1
        """)
        e(f"buffer_store_dword v{vCs}, off, {srd(SWS)}, s{t} sc1")
        e.vm.pop()
        e("s_mov_b64 exec, -1")
        e.label("L_nf")
        for l in self.dma_w(SWF, L_WF):
            self.wf_tok = e(l)
        for k in range(3):
            b = R + 16 * k
            for h in (0, 2):
                e(f"v_pk_add_f32 {vr(b + h, 2)}, {vr(b + h, 2)}, {vr(b + 4 + h, 2)}")
                e(f"v_pk_add_f32 {vr(b + 8 + h, 2)}, {vr(b + 8 + h, 2)}, {vr(b + 12 + h, 2)}")
            for h in (0, 2):
                e(f"v_pk_add_f32 {vr(b + h, 2)}, {vr(b + h, 2)}, {vr(b + 8 + h, 2)}")
        pairs = [R + 16 * k + h for k in range(3) for h in (0, 2)]
        self.gelu_pairs(pairs, [p + 4 for p in pairs])
        for k in range(3):
            b = R + 16 * k
            e(f"v_cvt_pk_bf16_f32 v{b}, v{b}, v{b + 1}\nv_cvt_pk_bf16_f32 v{b + 1}, v{b + 2}, v{b + 3}")
            e(f"v_cndmask_b32_e64 v{b}, 0, v{b}, s[{sMask + 2 * k}:{sMask + 2 * k + 1}]")
            e(f"v_cndmask_b32_e64 v{b + 1}, 0, v{b + 1}, s[{sMask + 2 * k}:{sMask + 2 * k + 1}]")
            e(f"ds_write_b64 v{vHw}, {vr(b, 2)} offset:{32 * k}")
        e.wait(lg=0)
        self.stamp("gelu", 2)
        e("s_barrier")
        self.stamp("B3", 2)

    def wf_reg(self, eps, s):
        if s < 4:
            i = 4 * (4 * eps + s)
            return ("a", A_WF + i) if i < 112 else ("v", VWF + i - 112)
        return ("v", VWF + 32 + 2 * eps)

    def wo_reg(self, tile, s):
        if s < 4:
            return ("a", 4 * (9 * s + tile))
        return ("v", 46 + 2 * tile)

    @staticmethod
    def rr(fb, off, n):
        return f"{fb[0]}[{fb[1] + off}:{fb[1] + off + n - 1}]"

    def conv2(self):
        e = self.e
        t = sT
        BM, B9, ACC9, TMP, ACC, Z = 46, 126, 162, 182, 190, 126
        mf, fill = [], []
        for k in range(4):
            for r in range(5):
                acc = vr(ACC9 + 4 * r)
                mf.append(f"v_mfma_f32_16x16x32_bf16 {acc}, {ar(A_W2 + 4 * k)}, {vr(B9 + 4 * (r + k))}, {acc if k else '0'}")
        for r in range(5):
            for k in range(16):
                for ab in range(2):
                    acc = vr(ACC + 8 * (r & 1) + 4 * ab)
                    mf.append(f"v_mfma_f32_16x16x32_bf16 {acc}, {ar(A_W2 + 16 + 8 * k + 4 * ab)}, {vr(BM + 4 * (r + k))}, {acc if k else '0'}")
        for i in range(8):
            fill.append((-1, 1, f"ds_read_b128 {vr(B9 + 4 * i)}, v{vHr9} offset:{64 * i}"))
        for i in range(20):
            dl = 20 + 2 * i if i < 16 else 20 + 32 * (i - 15) + 30
            fill.append((i, 1, f"ds_read_b128 {vr(BM + 4 * i)}, v{vHr} offset:{64 * i}", dl))
        for r in range(5):
            fill.append((23 + r, 1, f"ds_write_b128 v{vN9W}, {vr(ACC9 + 4 * r)} offset:{1024 * r}"))

        def wo(l):
            self.wo_tok = e(l)
        for k, l in enumerate(self.dma_w(SWO, L_WO)):
            fill.append((28 + 2 * k, 1, (lambda l=l: wo(l))))
        fill.append((50, 0, f"s_mul_i32 s{t}, s{sW}, 5120\ns_add_u32 s{t}, s{t}, s{sP}\ns_add_u32 s{t + 1}, s{t}, 4096"))
        fill.append((50, 0, f"s_lshl_b32 s{t + 2}, s{sW}, 9\ns_add_u32 s{t + 2}, s{t + 2}, s{sP}"))
        for r in range(5):
            end = 20 + 32 * r + 31
            a = ACC + 8 * (r & 1)
            d = TMP + 4 * (r & 1)
            for q in range(4):
                fill.append((end + 4 + q // 2, 1, f"v_cvt_pk_bf16_f32 v{d + q}, v{a + 2 * q}, v{a + 2 * q + 1}", end + 30))
            so, o = (t, 1024 * r) if r < 4 else (t + 1, 0)
            fill.append((end + 6, 1, f"buffer_store_dwordx4 {vr(d)}, v{vPst}, {srd(SWS)}, s{so} offen offset:{o} sc1", end + 30))
        PB = 66

        def bar4():
            self.stamp("preB4", 2)
            e.wait_tok(self.wf_tok)
            e.wait(lg=0)
            e("s_barrier")
            self.stamp("B4", 2)
        fill.append((PB, 2, bar4))
        for s in range(4):
            fill.append((PB + 1, 1, f"ds_read_b128 {vr(B9 + 4 * s)}, v{vN9R} offset:{5120 * s}"))
        for s in range(4):
            fill.append((PB + 1, 1, f"ds_read_b128 {vr(B9 + 16 + 4 * s)}, v{vRedL} offset:{5120 * s + 4096}"))
        fill.append((PB + 2, 1, f"buffer_load_dword v{vCs}, v{vFlC}, {srd(SWS)}, 0 offen sc1"))
        p = PB + 14
        for hb in (B9, B9 + 16):
            for q in range(4):
                fill.append((p, 1, f"v_add_f32 v{hb + q}, v{hb + q}, v{hb + 4 + q}"))
                fill.append((p, 1, f"v_add_f32 v{hb + 8 + q}, v{hb + 8 + q}, v{hb + 12 + q}"))
            for q in range(4):
                fill.append((p, 1, f"v_add_f32 v{hb + q}, v{hb + q}, v{hb + 8 + q}"))
            fill.append((p, 1, f"v_cvt_pk_bf16_f32 v{hb}, v{hb}, v{hb + 1}"))
            fill.append((p, 1, f"v_cvt_pk_bf16_f32 v{hb + 1}, v{hb + 2}, v{hb + 3}"))
        fill.append((p, 1, f"buffer_store_dwordx2 {vr(B9, 2)}, v{vPst9}, {srd(SWS)}, s{t + 2} offen sc1"))

        def st4():
            e(f"s_cmp_eq_u32 s{sW}, 0\ns_cbranch_scc0 L_n4")
            e(f"buffer_store_dwordx2 {vr(B9 + 16, 2)}, v{vPst9}, {srd(SWS)}, s{sP} offen offset:2048 sc1")
            e.vm.pop()
            e.label("L_n4")
        fill.append((p, 1, st4))
        p = PB + 5
        n = 0
        for eps in range(9):
            for s in range(5):
                fb = self.wf_reg(eps, s)
                for h in range(2 if s < 4 else 1):
                    fill.append((p + n, 1, f"ds_read_b64_tr_b16 {self.rr(fb, 2 * h, 2)}, v{vT1} offset:{L_WF + (32 * s + 16 * h) * 288 + 32 * eps}"))
                    n += 1
        fill.append((128, 0, lambda: self.stamp("preF", 2)))
        fill.append((128, 1, lambda: self.flag_check("L_r3", vFlC, vCs)))
        fill.append((128, 0, lambda: self.stamp("F", 2)))
        fill.append((19, 0, lambda: self.stamp("n9", 2)))
        for eps in range(9):
            fill.append((130 + eps, 1, f"buffer_load_dwordx4 {vr(Z + 4 * eps)}, v{vGe}, {srd(SWS)}, s{sGeO} offen offset:{64 * eps} sc1"))
        for q in range(4):
            fill.append((140, 1, f"v_mov_b32 v{vSent + q}, 0x3f803f80"))
        weave(e, mf, fill)

    def joint(self):
        e = self.e
        t = sT
        Z, PL, D, FB, TM, JP, OA, OP = 126, 64, 88, 96, 114, 64, 170, 96
        self.stamp("c2end")
        e.wait_tok(self.wo_tok)
        e("s_barrier")
        self.stamp("B5", 2)

        def ploads():
            for L in range(5):
                e(f"s_add_u32 s{t}, s{sPc}, {2 * PSTR * L}")
                e(f"buffer_load_dwordx4 {vr(PL + 4 * L)}, v{vPl if L < 4 else vPl4}, {srd(SWS)}, s{t} offen sc1")
            for N in range(3):
                e(f"s_add_u32 s{t}, s{sPc}, {4 * PSTR * N}")
                e(f"buffer_load_dword v{PL + 20 + N}, v{vPl9 if N < 2 else vPl9b}, {srd(SWS)}, s{t} offen sc1")

        def pcheck():
            e(f"v_max3_u32 v{vCs}, v{PL}, v{PL + 1}, v{PL + 2}")
            for i in range(10):
                e(f"v_max3_u32 v{vCs}, v{vCs}, v{PL + 3 + 2 * i}, v{PL + 4 + 2 * i}")
            e(f"v_cmp_eq_u32 vcc, -1, v{vCs}")
        e(f"v_mov_b32 v{PL + 23}, 0")
        reads, mf = [], []
        for s in range(5):
            for tile in range(9):
                fb = self.wo_reg(tile, s)
                for h in range(2 if s < 4 else 1):
                    row = (32 * s + 16 * h) * 288
                    if tile < 8:
                        reads.append(f"ds_read_b64_tr_b16 {self.rr(fb, 2 * h, 2)}, v{vT2} offset:{row + 64 * (tile >> 1) + 8 * (tile & 1)}")
                    else:
                        reads.append(f"ds_read_b64_tr_b16 {self.rr(fb, 2 * h, 2)}, v{vT1o} offset:{row + 256}")
                acc = vr(OA + 4 * tile)
                if s < 4:
                    mf.append((len(reads), f"v_mfma_f32_16x16x32_bf16 {acc}, {self.rr(fb, 0, 4)}, {vr(vSent)}, {acc if s else '0'}"))
                else:
                    mf.append((len(reads), f"v_mfma_f32_16x16x16_bf16 {acc}, {self.rr(fb, 0, 2)}, {vr(vSent, 2)}, {acc}"))
        mi = 0
        for i, l in enumerate(reads):
            if i == self.plpos:
                self.stamp("prePL", 2)
                e.wait(vm=0)
                self.stamp("PL", 2)
                ploads()
            e(l)
            while mi < len(mf) and mf[mi][0] + 12 <= i + 1:
                e(mf[mi][1])
                mi += 1
        while mi < len(mf):
            e(mf[mi][1])
            mi += 1
        self.stamp("cs", 2)
        pcheck()
        e("s_cbranch_vccnz L_r4")
        e.label("L_r4_back")

        def body():
            ploads()
            e.wait(vm=0)
            pcheck()
        self.add_stub("L_r4", body)
        self.stamp("pok")
        e(f"v_mfma_f32_16x16x32_bf16 {vr(D + 4)}, {vr(vA9)}, {vr(PL + 20)}, 0")
        for L in range(5):
            e(f"v_mfma_f32_16x16x32_bf16 {vr(D)}, {vr(vAI)}, {vr(PL + 4 * L)}, {vr(D) if L else '0'}")
        e(f"s_or_b32 s{t}, s{sG}, s{sJ}\ns_or_b32 s{t}, s{t}, s{sW}\ns_cmp_eq_u32 s{t}, 0\ns_cbranch_scc0 L_ne")
        snap = e.snapshot()
        e(f"v_mov_b32 v{vCs}, s{sN}\ns_mov_b64 exec, 1")
        e(f"buffer_store_dword v{vCs}, off, {srd(SWS)}, 0 sc1")
        e("s_mov_b64 exec, -1")
        e.label("L_ne")
        e.restore(snap)
        self.gelu_pairs([D + 4, D, D + 2], [TM, TM + 2, TM + 4], scaled=True)
        e(f"v_cvt_pk_bf16_f32 v{D + 4}, v{D + 4}, v{D + 4}")
        e(f"v_cvt_pk_bf16_f32 v{D}, v{D}, v{D + 1}\nv_cvt_pk_bf16_f32 v{D + 1}, v{D + 2}, v{D + 3}")
        e(f"ds_write_b16 v{vFw9}, v{D + 4}\nds_write_b64 v{vFw}, {vr(D, 2)}")
        e(f"ds_read_b64 {vr(FB + 16, 2)}, v{vFr9}")
        for s in range(4):
            e(f"ds_read_b128 {vr(FB + 4 * s)}, v{vFr} offset:{64 * s}")
        self.stamp("fb", 2)
        M = []
        V = []
        zend = {}
        tend = {}
        n = 0
        for eps in range(9):
            n += 14
            tend[eps] = n
        order = ["H0", "H1", "H2", "H3", "H4", "H5", "Z0", "Z1", "Z2", "H6", "H7", "H8", "Z3", "Z4", "O0", "Z5", "Z6", "O1",
                 "Z7", "Z8", "O2", "O3", "O4"]
        oend = {}
        for it in order:
            k = int(it[1])
            if it[0] == "H":
                acc = vr(Z + 4 * k)
                M.append((f"v_mfma_f32_16x16x16_bf16 {acc}, {self.rr(self.wf_reg(k, 4), 0, 2)}, {vr(FB + 16, 2)}, {acc}", 0))
            elif it[0] == "Z":
                acc = vr(Z + 4 * k)
                for s in range(4):
                    fb = self.wf_reg(k, s)
                    M.append((f"v_mfma_f32_16x16x32_bf16 {acc}, {self.rr(fb, 0, 4)}, {vr(FB + 4 * s)}, {acc}", 0))
                zend[k] = len(M)
            else:
                for tile in range(9):
                    fb = self.wo_reg(tile, k)
                    acc = vr(OA + 4 * tile)
                    if k < 4:
                        M.append((f"v_mfma_f32_16x16x32_bf16 {acc}, {self.rr(fb, 0, 4)}, {vr(JP + 4 * k)}, {acc}", tend[2 * k + 1]))
                    else:
                        M.append((f"v_mfma_f32_16x16x16_bf16 {acc}, {self.rr(fb, 0, 2)}, {vr(JP + 16, 2)}, {acc}", tend[8]))
                    oend[tile] = len(M)
        for eps in range(9):
            z = Z + 4 * eps
            for q in range(4):
                V.append((f"v_exp_f32 v{z + q}, v{z + q}", 2, zend[eps] + (5 if eps == 0 else 3)))
            for q in range(4):
                V.append((f"v_fma_f32 v{z + q}, v{z + q}, -0.5, -0.5", 1, 0))
            for q in range(4):
                V.append((f"v_rcp_f32 v{z + q}, v{z + q}", 2, 0))
            V.append((f"v_cvt_pk_bf16_f32 v{JP + 2 * eps}, v{z}, v{z + 1}", 1, 0))
            V.append((f"v_cvt_pk_bf16_f32 v{JP + 2 * eps + 1}, v{z + 2}, v{z + 3}", 1, 0))
        fl = self.outflags
        for p in range(5):
            tiles = (2 * p, 2 * p + 1) if p < 4 else (8,)
            for i, tile in enumerate(tiles):
                a = OA + 4 * tile
                rdy = min(oend[tile] + 4, len(M))
                V.append((f"v_cvt_pk_bf16_f32 v{OP + 4 * p + 2 * i}, v{a}, v{a + 1}", 1, rdy))
                V.append((f"v_cvt_pk_bf16_f32 v{OP + 4 * p + 2 * i + 1}, v{a + 2}, v{a + 3}", 1, rdy))
            if p < 4:
                V.append((f"buffer_store_dwordx4 {vr(OP + 4 * p)}, v{vOut}, {srd(SOUT)}, 0 offen offset:{64 * p} {fl}", 1, 0))
            else:
                V.append((f"buffer_store_dwordx2 {vr(OP + 16, 2)}, v{vOut9}, {srd(SOUT)}, 0 offen {fl}", 1, 0))
        mi = vi = 0
        credit = 0.0
        while mi < len(M) or vi < len(V):
            m_ok = mi < len(M) and M[mi][1] <= vi
            v_ok = vi < len(V) and V[vi][2] <= mi
            if m_ok and (credit <= 0 or not v_ok):
                e(M[mi][0])
                mi += 1
                credit = min(credit, 0) + 2.7
            else:
                assert v_ok, (mi, vi)
                e(V[vi][0])
                credit -= V[vi][1]
                vi += 1

    def epilogue(self):
        e = self.e
        if self.stamps:
            self.stamp("issued")
            e.wait(vm=0)
            self.stamp("drained")
            e("s_memrealtime s[62:63]")
            for i in range(28):
                e(f"v_mov_b32 v{46 + i}, s{self.SLOTS[i]}")
            e(f"v_mov_b32 v74, s96\nv_mov_b32 v75, s62\nv_mov_b32 v76, s{sSpin}\nv_mov_b32 v77, 0")
            e(f"s_lshl_b32 s61, s2, 2\ns_add_u32 s61, s61, s{sW}\ns_lshl_b32 s61, s61, 7\ns_add_u32 s61, s61, {WS_DBG}")
            e("s_mov_b64 exec, 1")
            for i in range(8):
                e(f"buffer_store_dwordx4 {vr(46 + 4 * i)}, off, {srd(SWS)}, s61 offset:{16 * i}")
            if self.dbgwg is not None:
                self.mk_srd(SW1R, 20, 256)
                e(f"s_cmp_eq_u32 s61, {WS_DBG + 512 * self.dbgwg + 256}\ns_cbranch_scc0 L_exit")
                for i in range(1, 16):
                    e(f"v_sub_u32 v{46 + i}, v{46 + i}, v46")
                e("v_sub_u32 v46, v75, v74")
                for i in range(4):
                    e(f"buffer_store_dwordx4 {vr(46 + 4 * i)}, off, {srd(SW1R)}, 0 offset:{16 * i}")
            e.raw("; STAMPS " + " ".join(self.stnames))
        if self.hold:
            e("s_mov_b32 s64, 0")
            e.label("L_hold")
            e("s_memrealtime s[62:63]\ns_add_u32 s64, s64, 1\ns_sub_u32 s62, s62, s96")
            e(f"s_cmp_gt_u32 s64, 100000\ns_cbranch_scc1 L_exit\ns_cmp_lt_u32 s62, {self.hold}\ns_cbranch_scc1 L_hold")
        e.label("L_exit")
        e("s_endpgm")

    def emit_stubs(self):
        e = self.e
        for name, body in self.stubs:
            e.label(name)
            e.forget()
            e("s_nop 7")
            body()
            e(f"s_add_u32 s{sSpin}, s{sSpin}, 1")
            e(f"s_cbranch_vccz {name}_back")
            e(f"s_cmp_lt_u32 s{sSpin}, {SPIN}\ns_cbranch_scc1 {name}\ns_branch {name}_back")

    def spare(self):
        e = self.e
        t = sT
        e.label("L_spare")
        e.forget()
        e.smem.append([("s", sN)])
        SWG, SGG = SWF, SWO
        self.mk_srd(SWG, 14, 41472)
        self.mk_srd(SGG, 10, 4608)
        e(f"s_mul_i32 s{t + 3}, s{sW}, 11264")
        for l in self.dma_w(SWG, 0):
            e(l)
        e(f"""
        v_and_b32 v46, 7, v{vLane}
        v_lshrrev_b32 v47, 4, v{vLane}
        v_mul_u32_u24 v48, 288, v46
        v_lshl_add_u32 v48, v47, 3, v48
        s_mul_i32 s{t}, s{sB}, 2304
        """)
        for s in range(4):
            for h in range(2):
                e(f"buffer_load_dwordx2 {vr(60 + 4 * s + 2 * h, 2)}, v48, {srd(SGG)}, s{t} offen offset:{64 * s + 32 * h}")
        e(f"buffer_load_dwordx2 {vr(76, 2)}, v48, {srd(SGG)}, s{t} offen offset:256")
        e(f"""
        v_lshrrev_b32 v49, 2, v{vLane}
        v_mul_u32_u24 v49, 288, v49
        v_and_b32 v50, 3, v{vLane}
        v_lshl_add_u32 v49, v50, 3, v49
        s_lshl_b32 s{t + 1}, s{sW}, 5
        v_add_u32 v49, s{t + 1}, v49
        v_mul_u32_u24 v51, 576, v46
        v_lshl_add_u32 v51, v47, 4, v51
        s_mul_i32 s{t + 2}, s{sQ}, 4608
        s_add_u32 s{t + 2}, s{t + 2}, {WS_GE}
        s_lshl_b32 s{t + 1}, s{sW}, 6
        s_add_u32 s{t + 2}, s{t + 2}, s{t + 1}
        s_mov_b32 s{t + 5}, s{sW}
        s_mul_i32 s{sN}, s{sN}, 1664525
        s_add_u32 s{sN}, s{sN}, 1013904223
        v_mov_b32 v52, s{sN}
        """)
        e.wait(vm=0)
        e("s_barrier")
        e.label("L_sp1")
        e.forget()
        for s in range(5):
            for h in range(2 if s < 4 else 1):
                e(f"ds_read_b64_tr_b16 {vr(80 + 4 * s + 2 * h, 2)}, v49 offset:{(32 * s + 16 * h) * 288}")
        for s in range(4):
            e(f"v_mfma_f32_16x16x32_bf16 v[100:103], {vr(80 + 4 * s)}, {vr(60 + 4 * s)}, {'v[100:103]' if s else '0'}")
        e("v_mfma_f32_16x16x16_bf16 v[100:103], v[96:97], v[76:77], v[100:103]")
        for q in range(4):
            e(f"v_mul_f32 v{104 + q}, {f32(S2)}, v{100 + q}")
        e(f"buffer_store_dwordx4 v[104:107], v51, {srd(SWS)}, s{t + 2} offen sc1")
        e(f"""
        v_add_u32 v49, 128, v49
        s_add_u32 s{t + 2}, s{t + 2}, 256
        s_add_u32 s{t + 5}, s{t + 5}, 4
        s_cmp_lt_u32 s{t + 5}, 9
        s_cbranch_scc1 L_sp1
        """)
        e.wait(vm=0)
        e("s_barrier")
        e(f"""
        s_cmp_eq_u32 s{sW}, 0
        s_cbranch_scc0 L_sp2
        s_add_u32 s{t}, s{sQ}, {252 + WS_FCL // 128}
        s_lshl_b32 s{t}, s{t}, 7
        s_mov_b64 exec, 1
        buffer_store_dword v52, off, {srd(SWS)}, s{t} sc1
        """)
        e.label("L_sp2")
        e("s_endpgm")

    def build(self):
        e = self.e
        e.raw(f"; @launch grid=(256,1,1) block=(256,1,1) lds={LDS_SIZE}")
        e.raw('.amdgcn_target "amdgcn-amd-amdhsa--gfx950"')
        e.raw(f".text\n.globl {KN}\n.p2align 8\n.type {KN},@function\n{KN}:")
        e(f"s_mov_b32 s{sSpin}, 0")
        self.prologue()
        self.setup()
        self.produce()
        self.conv1()
        self.transition()
        self.conv2()
        self.joint()
        self.epilogue()
        self.emit_stubs()
        self.spare()
        e.label("L_codeend")
        e.raw('.section .rodata,"a"\n.p2align 6')
        e.raw(f".amdhsa_kernel {KN}")
        e.raw("  .amdhsa_next_free_vgpr 512\n  .amdhsa_next_free_sgpr 102\n  .amdhsa_accum_offset 256\n"
              "  .amdhsa_group_segment_fixed_size 0\n  .amdhsa_kernarg_size 80\n  .amdhsa_user_sgpr_count 2\n"
              "  .amdhsa_user_sgpr_kernarg_segment_ptr 1\n  .amdhsa_system_sgpr_workgroup_id_x 1\n.end_amdhsa_kernel")
        return e.text()


if __name__ == "__main__":
    out = sys.argv[1]
    kw = eval("dict(" + (sys.argv[2] if len(sys.argv) > 2 else "") + ")")
    g = Gen(**kw)
    open(out, "w").write(g.build())
    print("written", out, "nops", g.e.nops, "lines", len(g.e.L))
```

```python
import re

TRANS = ("v_exp_", "v_log_", "v_rcp_", "v_rsq_", "v_sqrt_", "v_sin_", "v_cos_")
REG = re.compile(r"^(-?)\|?([vas])(\d+)\|?$")
RNG = re.compile(r"^(-?)([vas])\[(\d+):(\d+)\]$")


def regs_of(tok):
    tok = tok.strip()
    m = REG.match(tok)
    if m:
        return [(m.group(2), int(m.group(3)))]
    m = RNG.match(tok)
    if m:
        return [(m.group(2), i) for i in range(int(m.group(3)), int(m.group(4)) + 1)]
    if tok == "vcc":
        return [("s", 106), ("s", 107)]
    if tok == "vcc_lo":
        return [("s", 106)]
    if tok == "m0":
        return [("s", 124)]
    if tok == "exec":
        return [("s", 126), ("s", 127)]
    return []


class Ins:
    __slots__ = ("text", "op", "dst", "src", "kind", "srcc", "wide", "states")

    def __init__(self, text):
        self.text = text
        body = text.split(";")[0].strip()
        parts = body.split(None, 1)
        self.op = op = parts[0]
        rest = parts[1] if len(parts) > 1 else ""
        toks = [t.strip() for t in rest.split(",")] if rest else []
        flags = ""
        if toks:
            last = toks[-1].split(None, 1)
            toks[-1] = last[0]
            flags = last[1] if len(last) > 1 else ""
            toks = [t.split(None, 1)[0] for t in toks]
        self.dst, self.src, self.srcc, self.wide = [], [], [], False
        self.states = 1
        R = [regs_of(t) for t in toks]
        flat = lambda L: [x for l in L for x in l]
        if op.startswith("v_mfma"):
            self.kind = "mfma"
            self.dst = R[0]
            self.src = R[1] + R[2]
            self.srcc = R[3]
        elif op.startswith("v_"):
            self.kind = "valu"
            if op.startswith("v_permlane") and "swap" in op:
                self.dst = R[0] + R[1]
                self.src = R[0] + R[1]
            else:
                self.dst = R[0]
                self.src = flat(R[1:])
                if op.startswith(("v_fmac", "v_mac")):
                    self.src += R[0]
                if op.startswith("v_cndmask") and len(toks) == 3:
                    self.src += regs_of("vcc")
        elif op.startswith(("buffer_load", "global_load")):
            if re.search(r"\blds\b", rest):
                self.kind = "dma"
                self.src = flat(R) + regs_of("m0")
            else:
                self.kind = "vload"
                self.dst = R[0]
                self.src = flat(R[1:])
        elif op.startswith(("buffer_store", "global_store", "buffer_atomic")):
            self.kind = "vstore"
            self.src = flat(R)
            if op.endswith(("x4", "x3")):
                self.wide = R[0] if op.startswith("buffer") else R[1]
        elif op.startswith("ds_read"):
            self.kind = "dsread"
            self.dst = R[0]
            self.src = flat(R[1:])
        elif op.startswith("ds_write"):
            self.kind = "dswrite"
            self.src = flat(R)
        elif op.startswith(("s_load", "s_memtime", "s_memrealtime")):
            self.kind = "smem"
            self.dst = R[0]
            self.src = flat(R[1:])
        elif op == "s_nop":
            self.kind = "nop"
            self.states = int(toks[0]) + 1
        elif op.startswith(("s_waitcnt", "s_barrier", "s_branch", "s_cbranch", "s_endpgm", "s_setprio", "s_cmp", "s_bitcmp")):
            self.kind = "salu"
            self.src = flat(R)
        elif op.startswith("s_"):
            self.kind = "salu"
            self.dst = R[0]
            self.src = flat(R[1:])
        else:
            raise ValueError("unknown op " + text)


def ov(a, b):
    return bool(set(a) & set(b))


def need(p, c):
    n = 0
    vmem = c.kind in ("vload", "vstore", "dma")
    mem = vmem or c.kind in ("dsread", "dswrite")
    if p.kind == "valu":
        pv = [r for r in p.dst if r[0] != "s"]
        ps = [r for r in p.dst if r[0] == "s"]
        if c.kind == "mfma" and ov(pv, c.src + c.srcc):
            n = max(n, 2)
        if c.kind == "valu":
            if p.op.startswith(TRANS) and ov(pv, c.src):
                n = max(n, 1)
            if c.op.startswith(("v_readfirstlane", "v_readlane")) and ov(pv, c.src):
                n = max(n, 1)
            if c.op.startswith("v_permlane") and ov(pv, c.src):
                n = max(n, 2)
            if ov(ps, c.src):
                n = max(n, 2)
        if vmem and ov(ps, c.src):
            n = max(n, 5)
        if c.kind in ("salu", "smem") and (ov(ps, c.src) or (c.op.startswith("s_cbranch_vcc") and ov(ps, regs_of("vcc")))):
            n = max(n, 1)
    if p.kind == "mfma":
        if c.kind == "mfma":
            if ov(p.dst, c.src):
                n = max(n, 8)
            if ov(p.dst, c.srcc) and (p.dst != c.srcc or p.op != c.op):
                n = max(n, 6)
            if ov(p.dst, c.dst) and p.dst != c.srcc:
                n = max(n, 6)
        elif c.kind == "valu" or mem:
            if ov(p.dst, c.src + c.dst):
                n = max(n, 8)
            if ov(p.srcc, c.dst):
                n = max(n, 3)
    if p.kind == "vstore" and p.wide and ov(p.wide, c.dst):
        n = max(n, 2)
    if p.kind == "salu" and c.kind == "dma" and ov(p.dst, regs_of("m0")):
        n = max(n, 1)
    return n


class Em:
    def __init__(self):
        self.L = []
        self.hist = []
        self.vm = []
        self.lg = []
        self.smem = []
        self.nid = 0
        self.nops = 0
        self.old = None

    def raw(self, s):
        self.L.append(s)

    def comment(self, s):
        self.L.append("; " + s)

    def label(self, name):
        self.L.append(name + ":")

    def _push(self, ins):
        self.L.append("  " + ins.text)
        self.hist.append(ins)
        if len(self.hist) > 24:
            self.hist.pop(0)

    def wait(self, vm=None, lg=None):
        parts = []
        if vm is not None:
            vm = min(vm, 63)
            parts.append(f"vmcnt({vm})")
            if len(self.vm) > vm:
                self.vm = self.vm[len(self.vm) - vm:] if vm else []
        if lg is not None:
            lg = min(lg, 15)
            parts.append(f"lgkmcnt({lg})")
            if len(self.lg) > lg:
                self.lg = self.lg[len(self.lg) - lg:] if lg else []
            if lg == 0:
                self.smem = []
        self._push(Ins("s_waitcnt " + " ".join(parts)))

    def wait_tok(self, tok):
        for i, (t, _) in enumerate(self.vm):
            if t == tok:
                self.wait(vm=len(self.vm) - 1 - i)
                return
        for i, (t, _) in enumerate(self.lg):
            if t == tok:
                self.wait(lg=0 if self.smem else len(self.lg) - 1 - i)
                return

    def _auto_wait(self, ins):
        touched = set(ins.src + ins.dst + ins.srcc)
        vm = lg = None
        for i, (_, d) in enumerate(self.vm):
            if touched & set(d):
                vm = len(self.vm) - 1 - i
        for i, (_, d) in enumerate(self.lg):
            if touched & set(d):
                lg = len(self.lg) - 1 - i
        if lg is not None and self.old:
            while lg > 0 and self.old(self.lg[len(self.lg) - lg][0]):
                lg -= 1
        if lg is not None and self.smem:
            lg = 0
        if any(touched & set(d) for d in self.smem):
            lg = 0
        if vm is not None or lg is not None:
            self.wait(vm, lg)

    def forget(self):
        self.hist, self.vm, self.lg, self.smem = [], [], [], []

    def snapshot(self):
        return (list(self.hist), list(self.vm), list(self.lg), list(self.smem))

    def restore(self, s):
        self.hist, self.vm, self.lg, self.smem = (list(x) for x in s)

    def __call__(self, s):
        tok = None
        for line in s.split("\n"):
            line = line.strip()
            if not line:
                continue
            if line.endswith(":"):
                self.label(line[:-1])
                continue
            if line.startswith(";"):
                self.L.append(line)
                continue
            ins = Ins(line)
            assert ins.op != "s_waitcnt", "use .wait()"
            self._auto_wait(ins)
            dist, pad = 0, 0
            for p in reversed(self.hist):
                n = need(p, ins)
                if n > dist:
                    pad = max(pad, n - dist)
                dist += p.states
                if dist >= 8:
                    break
            if pad:
                self._push(Ins(f"s_nop {pad - 1}"))
                self.nops += pad
            self._push(ins)
            self.nid += 1
            tok = self.nid
            if ins.kind in ("vload", "vstore", "dma"):
                self.vm.append((tok, ins.dst))
                assert len(self.vm) <= 63, "vmcnt overflow"
            elif ins.kind in ("dsread", "dswrite"):
                self.lg.append((tok, ins.dst))
            elif ins.kind == "smem":
                self.smem.append(ins.dst)
        return tok

    def text(self):
        return "\n".join(self.L) + "\n"


def weave(e, mfmas, fillers, per=2):
    q = sorted(fillers, key=lambda f: f[0])
    qi = 0

    def run(it):
        if callable(it):
            it()
        else:
            e(it)

    while qi < len(q) and q[qi][0] < 0:
        run(q[qi][2])
        qi += 1
    for i, m in enumerate(mfmas):
        last = -1
        for k in range(qi, len(q)):
            if len(q[k]) > 3 and q[k][3] <= i:
                assert q[k][0] < i, (q[k], i)
                last = k
        while qi <= last:
            run(q[qi][2])
            qi += 1
        e(m)
        budget = per
        while qi < len(q) and q[qi][0] <= i and budget > 0:
            budget -= q[qi][1]
            run(q[qi][2])
            qi += 1
    while qi < len(q):
        run(q[qi][2])
        qi += 1


def icost(ins):
    k, op = ins.kind, ins.op
    if k == "valu":
        return 8 if op.startswith(TRANS) else 4
    if k == "nop":
        return 4 * ((ins.states + 3) // 4) if ins.states > 1 else 4
    if k == "dsread":
        return 8
    if k == "dswrite":
        return {"ds_write_b128": 24, "ds_write_b64": 16}.get(op, 12)
    if k in ("vload", "dma"):
        return 12
    if k == "vstore":
        return 29 if op.endswith("x4") else 17 if op.endswith("x2") else 12
    if op.startswith("s_cbranch"):
        return 20
    if op == "s_memtime":
        return 0
    return 4


def tacost(ins):
    op = ins.op
    if ins.kind in ("vload", "dma"):
        return 64 if op.endswith("x4") else 32 if op.endswith("x2") else 20
    if ins.kind == "vstore":
        return 128 if op.endswith("x4") else 64 if op.endswith("x2") else 32
    return 0


class F:
    def __init__(self, item, pos=-1, dl=10 ** 6, lds=None, ta=None, cost=None, cb=None, after=None):
        self.item, self.pos, self.dl, self.lds, self.ta, self.cost, self.cb, self.after = item, pos, dl, lds, ta, cost, cb, after
        self.at = None


def ldscost(ins):
    return {"ds_read_b128": 16, "ds_write_b128": 52, "ds_write_b64": 26}.get(ins.op, 8) if ins.kind in ("dsread", "dswrite") else 0


def weave2(e, mfmas, streams, ta0=0, slack=24, log=None, soft=(), age=160):
    softk = [k for k, s in enumerate(s for s in streams if s) if any(s is x for x in soft)]
    streams = [list(s) for s in streams if s]
    for s in streams:
        for k in range(len(s) - 2, -1, -1):
            s[k].dl = min(s[k].dl, s[k + 1].dl)
    for s in streams:
        nxt = 10.0 ** 6
        for f in reversed(s):
            if callable(f.item):
                sp = 1 if f.cost else 0
            else:
                L = [Ins(l) for l in f.item.split("\n")]
                sp = max(sum(tacost(x) for x in L) if f.ta is None else f.ta, sum(ldscost(x) for x in L) if f.lds is None else f.lds,
                         2 * sum(icost(x) for x in L if x.kind != "salu")) / 16.0
            nxt = f.pr = min(f.dl, nxt) - sp * 1.15
    born = {}
    e.old = lambda tok: st["T"] - born.get(tok, -1000) >= age
    head = [0] * len(streams)
    st = dict(T=0.0, ta=ta0, lds=0.0)

    def trial(f):
        n, snap, nid, nops = len(e.L), e.snapshot(), e.nid, e.nops
        e(f.item)
        out = [Ins(l.strip()) for l in e.L[n:]]
        del e.L[n:]
        e.restore(snap)
        e.nid, e.nops = nid, nops
        return out

    def advance(t, L, valu):
        for ins in L:
            if ins.kind == "valu":
                t = max(t, 8)
                valu = True
            elif valu and ins.kind in ("vload", "dma", "vstore"):
                t += 4
            t += icost(ins)
        return t, valu

    def run(f, i, t, valu):
        n = len(e.L)
        tok = f.item() if callable(f.item) else e(f.item)
        if f.cb:
            f.cb(tok)
        f.at, f.ln = i, n
        born[tok] = st["T"] + t
        L = [Ins(l.strip()) for l in e.L[n:] if not l.endswith(":") and not l.startswith(";")]
        now = st["T"] + t
        ta = sum(tacost(x) for x in L) if f.ta is None else f.ta
        ld = sum(ldscost(x) for x in L) if f.lds is None else f.lds
        if ta:
            t += max(0, st["ta"] - now - 3 * 64)
            st["ta"] = max(st["ta"], now) + ta
        if ld:
            st["lds"] = max(st["lds"], now) + ld
        return advance(t, L, valu)

    def ready(f, i):
        if f.pos > i:
            return False
        if f.after is not None:
            o, d = f.after
            if o.at is None or (o.at + d > i and i < 10 ** 5):
                return False
        return True

    def gap(i, t, length, free):
        valu = False
        t0 = t
        while True:
            cand = [k for k in range(len(streams)) if head[k] < len(streams[k])]
            forced = [k for k in cand if streams[k][head[k]].dl <= i + 1 and k not in softk]
            pick = None
            if forced:
                pick = forced[0]
                assert ready(streams[pick][head[pick]], i), (streams[pick][head[pick]].item, i)
            else:
                best = None
                for k in cand:
                    f = streams[k][head[k]]
                    if not ready(f, i):
                        continue
                    if free:
                        key = (f.dl, f.pos, k)
                    else:
                        if callable(f.item):
                            L = None
                            c = f.cost or 0
                            te, alone = (max(t, 8) if c else t) + c, 8 + c
                            ta, ld = f.ta or 0, f.lds or 0
                            sal = c == 0
                        else:
                            L = trial(f)
                            te, _ = advance(t, L, valu)
                            alone, _ = advance(4, L, False)
                            ta = sum(tacost(x) for x in L) if f.ta is None else f.ta
                            ld = sum(ldscost(x) for x in L) if f.lds is None else f.lds
                            sal = all(x.kind == "salu" for x in L)
                        if ta and st["ta"] > st["T"] + t + slack:
                            continue
                        if ld and st["lds"] > st["T"] + t + 8:
                            continue
                        if te > length and not (alone > length and t == 4):
                            continue
                        key = (0 if (sal and t < 8 and not any(
                            (not callable(streams[q][head[q]].item)) and ready(streams[q][head[q]], i) and streams[q][head[q]].pr <= f.pr
                            and Ins(streams[q][head[q]].item.split("\n")[0]).kind in ("vload", "dma", "vstore") and st["ta"] <= st["T"] + t + slack
                            for q in cand if q != k)) else 1, f.pr, f.pos, k)
                    if best is None or key < best[0]:
                        best = (key, k)
                if best:
                    pick = best[1]
            if pick is None:
                return t + (1 if valu else 0)
            f = streams[pick][head[pick]]
            head[pick] += 1
            t, valu = run(f, i, t, valu)

    st["T"] += gap(-1, 0, 0, True) if any(s[0].pos < 0 for s in streams) else 0
    over = []
    for i, m in enumerate(mfmas):
        n = len(e.L)
        e(m)
        st["T"] += 4 * (len(e.L) - n - 1)
        length = 8 if "x16_" in m else 16
        t = 4
        if i + 1 < len(mfmas):
            n = len(e.L)
            e._auto_wait(Ins(mfmas[i + 1]))
            t += 4 * (len(e.L) - n)
        t = gap(i, t, length, False)
        if t > length + 1:
            over.append((i, t - length))
        st["T"] += max(t, length)
    tm = st["T"]
    st["T"] += gap(10 ** 5, 0, 0, True)
    e.old = None
    if log:
        left = [(f.item if not callable(f.item) else "fn") for s in streams for f in s if f.at == 10 ** 5]
        print(f"{log}: model {tm:.0f} + tail {st['T'] - tm:.0f} ({len(left)} left), over {sum(o for _, o in over)}: {over}")
    return st
```

```python
import math
import struct
import sys
from emit import Em, F, weave2, Ins, icost

KN = "standalone__seq2seq_rnn_t_joint__speech_kernel"


def f32(x):
    return "0x%08x" % struct.unpack("<I", struct.pack("<f", x))[0]


def vr(b, n=4):
    return f"v[{b}:{b + n - 1}]" if n > 1 else f"v{b}"


def ar(b, n=4):
    return f"a[{b}:{b + n - 1}]" if n > 1 else f"a{b}"


WS_FW2 = 0x2D0000
WS_FCL = 0x10000
WS_GE = 0x20000
WS_W1 = 0x30000
WS_W2 = 0x180000
WS_P = 0x300000
WS_DBG = 0x1000000
PSTR = 24576
BIG = 0x80000000
L_X = 0
L_WF = 0
L_WO = 45056
L_RED = 110592
L_H = 155648
L_XB, L_XC = 49152, 98304
L_FS = L_RED + 20480
LDS_SIZE = 162368
SPIN = 20000

SX, SW1R, SWS, SWF, SWO, SOUT, SW2R = 24, 28, 32, 36, 40, 44, 48
sQ, sJ, sG, sB, sGi, sW, sN = 54, 55, 56, 57, 58, 59, 60
sT = 61
sW1, sW2, sP, sPc = 70, 71, 72, 73
sMask = 74
sSpin = 80
sGeO = 81
sXm, sXl, sK1, sG2, sS2 = 89, 90, 91, 92, 93
sXb, sXc = 88, 3
sPj, sPg = 79, 81
sC = 98
sIS = 100

(vT1o, vLane, vL16, vL16b, vChk, vXa0, vP94, vXa2, vRedW, vRedR, vPstB, vHr, vFree, vN9W, vN9R, vRedL, vPst, vPst9,
 vT1, vT2, vPl, vPl4, vPl9, vPl9b, vFw, vFw9, vFr, vFr9, vOut, vOut9, vGe, vFlA, vFlC, vCs) = range(34)
vAI, vA9, vSent = 34, 38, 42
RING, NSLOT = 46, 24
WBUF = 142
WCHK = 202
VWF = 206
W2D, W2R, W2T, W2F, W2N, vXb, vXo = 206, 214, 215, 216, 217, 218, 219
vHw3, vH94, vXc, vClr, vTch = 220, 223, 227, 228, 229
A_W2, A_ACC, A_WF = 0, 144, 144

C1 = 2.0 * math.sqrt(2.0 / math.pi) * math.log2(math.e)
C2 = C1 * 0.044715
S2 = 2.0 * math.log2(math.e)


def srd(i):
    return f"s[{i}:{i + 3}]"


class Gen:
    def __init__(self, stamps=0, plpos=40, outflags="nt", dbgwg=None, hold=0, rot=3, n1=6, gate=1,
                 pre="c0 S c1 | g2 B4 c2 B8", cpos=150, lb=60, barc=262, w2pos=(41, 100, 200, 240), both=1, gray=1, tch=0, pb=70, fpos=150,
                 clr=0, log=0, nlate=0, trd=6, trq='cfo', wfl=0, gestep=4, bdl=70, xfl='', gfl='', rotb=0, bfl=None, xt=0, t1=(), t2=0, pmap=0, nb=1):
        self.e = Em()
        for k, v in list(locals().items()):
            if k != "self":
                setattr(self, k, v)
        self.stubs = []
        self.nst = 0
        self.stnames = []

    SLOTS = [82, 84, 86, 0, 52] + list(range(4, 20, 2))
    SETS = {1: "karg xland c0ok c2ok c4ok W2 c1end B2 B3 c2end pok issued drained",
            2: "karg c0ok c1ok c2ok c3ok c4ok preW2 W2 c5ok c6ok c1end B2 drained",
            3: "karg x1 setup prod x2 x3 xland B1 c0ok c1ok B2 drained",
            4: "karg c1end B2 gelu B3 preB4 B4 preF F c2end B5 pok drained",
            5: "karg c2end B5 prePL PL cs pok fb issued drained"}

    def stamp(self, name="", lvl=1):
        if self.stamps and name in self.SETS.get(self.stamps, self.stamps).split():
            i = self.SLOTS[self.nst]
            self.nst += 1
            self.stnames.append(name)
            keep = list(self.e.smem)
            self.e(f"s_memtime s[{i}:{i + 1}]")
            self.e.smem = keep

    def posstamps(self, pre, fill):
        if self.stamps:
            for nm in self.SETS.get(self.stamps, self.stamps).split():
                if nm[0] == pre and nm[1:].isdigit():
                    fill.append([F((lambda nm=nm: self.stamp(nm)), int(nm[1:]), int(nm[1:]) + 1)])

    def mk_srd(self, d, base, size):
        self.e(f"s_mov_b32 s{d}, s{base}\ns_mov_b32 s{d + 1}, s{base + 1}\ns_mov_b32 s{d + 2}, {size}\ns_mov_b32 s{d + 3}, 0x20000")

    def gelu_pairs(self, pairs, tmp, scaled=False):
        e = self.e
        for x, t in zip(pairs, tmp):
            e(f"v_pk_mul_f32 {vr(t, 2)}, {vr(x, 2)}, {vr(x, 2)}")
        for x, t in zip(pairs, tmp):
            e(f"v_pk_fma_f32 {vr(t, 2)}, {vr(t, 2)}, s[{sC}:{sC + 1}], s[{sC}:{sC + 1}] op_sel:[0,0,1] op_sel_hi:[1,0,1]")
        for x, t in zip(pairs, tmp):
            e(f"v_pk_mul_f32 {vr(t, 2)}, {vr(t, 2)}, {vr(x, 2)}")
        for x, t in zip(pairs, tmp):
            e(f"v_exp_f32 v{t}, v{t}\nv_exp_f32 v{t + 1}, v{t + 1}")
        for x, t in zip(pairs, tmp):
            if scaled:
                e(f"v_pk_fma_f32 {vr(t, 2)}, {vr(t, 2)}, s[{sIS}:{sIS + 1}], s[{sIS}:{sIS + 1}]")
            else:
                e(f"v_pk_add_f32 {vr(t, 2)}, {vr(t, 2)}, 1.0 op_sel_hi:[1,0]")
        for x, t in zip(pairs, tmp):
            e(f"v_rcp_f32 v{t}, v{t}\nv_rcp_f32 v{t + 1}, v{t + 1}")
        for x, t in zip(pairs, tmp):
            e(f"v_pk_mul_f32 {vr(x, 2)}, {vr(x, 2)}, {vr(t, 2)}")

    def prologue(self):
        e = self.e
        e("s_cmp_ge_u32 s2, 256\ns_cbranch_scc1 L_exit")
        e("s_load_dwordx16 s[4:19], s[0:1], 0\ns_load_dwordx4 s[20:23], s[0:1], 64")
        if self.stamps or self.hold:
            e("s_memrealtime s[96:97]")
        e("s_getpc_b64 s[52:53]")
        e.label("L_pc")
        e("v_lshlrev_b32 v1, 7, v0")
        e("v_min_u32 v1, L_codeend-L_pc-4, v1")
        e("global_load_dword v255, v1, s[52:53]")
        e(f"v_lshrrev_b32 v2, 6, v0\nv_and_b32 v{vLane}, 63, v0")
        e(f"v_readfirstlane_b32 s{sW}, v2")
        t = sT
        e(f"""
        s_and_b32 s{t}, s2, 1
        s_lshl_b32 s{t}, s{t}, 5
        s_lshr_b32 s{t + 1}, s2, 3
        s_add_u32 s{t}, s{t}, s{t + 1}
        s_bfe_u32 s{sQ}, s2, 0x20001
        s_bfe_u32 s{t + 1}, s2, {0x10002 if self.gray else 0}
        s_xor_b32 s{sQ}, s{sQ}, s{t + 1}
        s_mul_i32 s{sJ}, s{t}, 37
        s_lshr_b32 s{sJ}, s{sJ}, 8
        s_mul_i32 s{t + 1}, s{sJ}, 7
        s_sub_u32 s{t + 2}, s{t}, s{t + 1}
        s_mul_i32 s{sG}, s{sQ}, 7
        s_add_u32 s{sG}, s{sG}, s{t + 2}
        s_lshr_b32 s{sB}, s{sQ}, 1
        s_mul_i32 s{t + 1}, s{sB}, 14
        s_sub_u32 s{sGi}, s{sG}, s{t + 1}
        s_mul_i32 s{t + 7}, s{sB}, 1152000
        """)
        if self.pmap:
            e(f"""
            s_mul_i32 s{t + 1}, s{t}, 57
            s_lshr_b32 s{t + 1}, s{t + 1}, 9
            s_mul_i32 s{t + 2}, s{t + 1}, 9
            s_sub_u32 s{sPj}, s{t}, s{t + 2}
            s_mul_i32 s{sPg}, s{sQ}, 7
            s_add_u32 s{sPg}, s{sPg}, s{t + 1}
            """)
        else:
            e(f"s_mov_b32 s{sPj}, s{sJ}\ns_mov_b32 s{sPg}, s{sG}")
        e(f"v_lshlrev_b32 v{vL16}, 4, v{vLane}")
        e(f"v_lshrrev_b32 v46, 1, v{vLane}\nv_and_b32 v47, 1, v{vLane}\nv_lshlrev_b32 v47, 4, v47")
        e("v_mul_u32_u24 v48, 288, v46\nv_add_u32 v48, v48, v47")
        e(f"""
        v_lshrrev_b32 v46, 2, v{vLane}
        v_mul_u32_u24 v46, 576, v46
        v_and_b32 v47, 3, v{vLane}
        v_lshl_add_u32 v{vXc}, v47, 4, v46
        s_mul_i32 s{t}, s{sW}, 12288
        s_add_u32 s{sXl}, s{t}, {11 * 1024}
        s_and_b32 s{t + 1}, s{sJ}, 3
        s_mul_i32 s{t + 1}, s{t + 1}, {1024 * self.rot}
        s_add_u32 s{sXm}, s{t}, s{t + 1}
        s_mul_i32 s{t + 1}, s{t + 1}, 9
        s_mul_i32 s{t}, s{sGi}, 82944
        s_sub_u32 s{t}, s{t}, 12928
        v_add_u32 v{vXc}, s{t}, v{vXc}
        s_lshl_b32 s{t}, s{sW}, 6
        s_add_u32 s{t}, s{t}, s{t + 1}
        v_add_u32 v{vXo}, s{t}, v{vXc}
        s_movk_i32 s{sK1}, 1024
        """)
        if self.xt == 1:
            e(f"""
            s_lshr_b32 s{t}, s2, 3
            s_lshl_b32 s{t}, s{t}, 2
            s_add_u32 s{t}, s{t}, s{sW}
            s_mul_i32 s{t}, s{t}, 4864
            s_and_b32 s{t + 1}, s{sQ}, 1
            s_mul_i32 s{t + 1}, s{t + 1}, {7 * 82944}
            s_add_u32 s{t}, s{t}, s{t + 1}
            s_sub_u32 s{t}, s{t}, 13056
            v_lshl_add_u32 v50, v{vLane}, 7, s{t}
            v_cmp_gt_u32 vcc, 38, v{vLane}
            v_cndmask_b32 v50, -16, v50, vcc
            """)
        e(f"""
        s_and_b32 s{t + 5}, s{sPg}, 3
        s_lshl_b32 s{t + 3}, s{t + 5}, 5
        s_add_u32 s{t + 4}, s{t + 3}, {144 - 288 * 16}
        s_add_u32 s{t + 3}, s{t + 3}, 16
        s_mul_i32 s{t + 5}, s{t + 5}, 1152
        s_add_u32 s{t + 5}, s{t + 5}, {-16 - 288 * 31}
        s_lshr_b32 s{t + 2}, s{sPg}, 2
        s_mul_i32 s{t + 2}, s{t + 2}, 5
        s_lshl_b32 s{t + 6}, s{sPj}, 5
        s_mul_i32 s{sPj}, s{sPj}, 28
        s_add_u32 s{sPj}, s{sPj}, s{sPg}
        """)
        ioff = [0, 0, 2048, 3072, 3072]
        for i in range(5):
            e(f"""
            s_cmp_lt_u32 s{t + 2}, {31 - i}
            s_cselect_b32 s{t}, s{t + 4}, s{t + 5}
            s_cmp_lt_u32 s{t + 2}, {16 - i}
            s_cselect_b32 s{t}, s{t + 3}, s{t}
            """)
            if i == 0:
                e(f"s_mul_i32 s{t + 1}, s{t + 2}, 288")
            e(f"""
            s_add_u32 s{t}, s{t}, s{t + 1}
            s_mul_i32 s{t}, s{t}, 288
            s_add_u32 s{t}, s{t}, s{t + 6}
            s_add_u32 s{sMask + i}, s{t}, {82944 * i - ioff[i]}
            """)
        e(f"v_add_u32 v49, s{sMask + 1}, v48")
        e(f"s_mov_b32 m0, {L_RED}")
        e(f"s_mov_b32 s{SW1R + 2}, 1285632\ns_mov_b32 s{SW1R + 3}, 0x20000\ns_mov_b32 s{SX + 2}, 1152000\ns_mov_b32 s{SX + 3}, 0x20000")
        e.wait(lg=0)
        self.stamp("karg")
        if self.stamps:
            e("s_memrealtime s[94:95]")
            e.smem = []
        e(f"s_mov_b32 s{SW1R}, s6\ns_mov_b32 s{SW1R + 1}, s7")
        e(f"s_cmp_eq_u32 s{sJ}, 9\ns_cbranch_scc1 L_spare")
        e(f"s_cmp_eq_u32 s{sW}, 0\ns_cbranch_scc0 L_g1")
        for i in (0, 2, 3, 1, 4):
            if i == 1:
                e(f"s_mov_b32 m0, {L_RED + 1024}")
                e(f"buffer_load_dwordx4 v49, {srd(SW1R)}, 0 offen {self.gfl} lds")
            else:
                e(f"buffer_load_dwordx4 v48, {srd(SW1R)}, s{sMask + i} offen offset:{ioff[i]} {self.gfl} lds")
        e.label("L_g1")
        e.forget()
        e(f"s_add_u32 s{SX}, s4, s{t + 7}\ns_addc_u32 s{SX + 1}, s5, 0")
        if self.xt == 1:
            e(f"buffer_load_dword v254, v50, {srd(SX)}, 0 offen")
        self.x_loop("L_x1", self.n1)
        self.stamp("x1", 3)
        e(f"s_load_dword s{sN}, s[22:23], 0")
        e(f"s_mul_i32 s21, s{sPj}, 5376\ns_add_u32 s21, s21, {WS_W1}")
        self.mk_srd(SWS, 22, 0x10000000)
        self.mk_srd(SW2R, 8, 1285632)
        if self.xt == 2:
            self.xtouch()

    def xtouch(self):
        t = sT
        self.e(f"""
        s_lshr_b32 s{t}, s2, 3
        s_lshl_b32 s{t}, s{t}, 2
        s_add_u32 s{t}, s{t}, s{sW}
        s_mul_i32 s{t}, s{t}, 17
        v_add_u32 v253, s{t}, v{vLane}
        v_lshlrev_b32 v252, 2, v253
        v_lshrrev_b32 v253, 2, v253
        s_mov_b32 s{t}, 0x84308430
        v_bfe_u32 v252, s{t}, v252, 4
        v_mad_u32_u24 v253, v253, 9, v252
        s_and_b32 s{t + 1}, s{sQ}, 1
        s_mul_i32 s{t + 1}, s{t + 1}, {7 * 82944}
        s_sub_u32 s{t}, s{t + 1}, 13056
        v_lshl_add_u32 v253, v253, 7, s{t}
        v_cmp_gt_u32 vcc, 17, v{vLane}
        v_cndmask_b32 v253, -16, v253, vcc
        buffer_load_dword v254, v253, {srd(SX)}, 0 offen
        """)

    def x_loop(self, name, n):
        e = self.e
        t = sT
        if n == 0:
            return
        e(f"s_mov_b32 m0, s{sXm}\ns_movk_i32 s{t + 1}, {n}")
        e.label(name)
        e(f"""
        buffer_load_dwordx4 v{vXo}, {srd(SX)}, 0 offen {self.xfl} lds
        s_cmp_eq_u32 m0, s{sXl}
        s_cselect_b32 s{t}, {(-11 * 1024) & 0xffffffff}, s{sK1}
        s_add_u32 m0, m0, s{t}
        s_mul_i32 s{t}, s{t}, 9
        v_add_u32 v{vXo}, s{t}, v{vXo}
        s_sub_u32 s{t + 1}, s{t + 1}, 1
        s_cmp_lg_u32 s{t + 1}, 0
        s_cbranch_scc1 {name}
        s_mov_b32 s{sXm}, m0
        """)
        tok = e.vm[-1][0]
        for _ in range(n - 1):
            e.vm.insert(len(e.vm) - 1, (-1, []))
        return tok

    def setup(self):
        e = self.e
        t = sT
        m, g, a, b, c = 46, 47, 48, 49, 50
        self.mk_srd(SWF, 12, 41472)
        self.mk_srd(SWO, 16, 41472)
        self.mk_srd(SOUT, 18, 4608000)
        e(f"""
        v_and_b32 v{m}, 15, v{vLane}
        v_lshrrev_b32 v{g}, 4, v{vLane}
        v_mul_u32_u24 v{a}, 704, v{m}
        v_lshl_add_u32 v{a}, v{g}, 4, v{a}
        s_mul_i32 s{t}, s{sW}, 12288
        v_add_u32 v{vXa0}, s{t}, v{a}
        s_add_u32 s{sXb}, s{t}, {L_XB}
        s_lshl_b32 s{t}, s{sW}, 8
        s_add_u32 s{t}, s{t}, {L_XC}
        v_add_u32 v{vXa2}, s{t}, v{a}
        s_lshl_b32 s{t}, s{sW}, 6
        s_add_u32 s{t}, s{t}, 256
        v_add_u32 v{vXb}, s{t}, v{vXc}
        s_mul_i32 s{t}, s{sW}, 3072
        s_add_u32 s{sXc}, s{t}, {L_XC}
        s_mul_i32 s{t}, s{t}, 9
        s_sub_u32 s{t}, s{t}, 64
        v_add_u32 v{vXc}, s{t}, v{vXc}
        v_add_u32 v{vRedL}, {L_RED}, v{vL16}
        s_mul_i32 s{t}, s{sW}, 11264
        v_add_u32 v{vRedW}, s{t}, v{vRedL}
        s_mul_i32 s{t + 1}, s{sW}, 3
        s_min_u32 s{t + 1}, s{t + 1}, 8
        s_lshl_b32 s{t}, s{t + 1}, 10
        v_add_u32 v{vRedR}, s{t}, v{vRedL}
        s_mul_i32 s{t}, s{sW}, 5120
        v_add_u32 v{vN9W}, s{t}, v{vRedL}
        s_lshl_b32 s{t}, s{sW}, 10
        v_add_u32 v{vN9R}, s{t}, v{vRedL}
        v_mul_u32_u24 v{a}, 11, v{m}
        v_add_u32 v{a}, s{t + 1}, v{a}
        s_mul_i32 s{t}, s{sGi}, 144
        s_sub_u32 s{t}, s{t}, 15
        s_movk_i32 s{t + 2}, 2000
        v_lshlrev_b32 v{c}, 3, v{g}
        v_add_u32 v{c}, {L_H}, v{c}
        """)
        for k in range(3):
            e(f"""
            v_mul_u32_u24 v{b}, 205, v{a}
            v_lshrrev_b32 v{b}, 11, v{b}
            v_add_u32 v{b}, v{b}, v{a}
            v_lshl_add_u32 v{vHw3 + k}, v{b}, 5, v{c}
            v_add_u32 v{b}, s{t}, v{a}
            v_cmp_gt_u32_e64 s[{sMask + 2 * k}:{sMask + 2 * k + 1}], s{t + 2}, v{b}
            """)
            if k < 2:
                e(f"v_add_u32 v{a}, 1, v{a}")
        e(f"""
        v_mul_u32_u24 v{a}, 352, v{m}
        v_lshl_add_u32 v{a}, v{g}, 4, v{a}
        v_add_u32 v{vHr}, {L_H}, v{a}
        s_mul_i32 s{t}, s{sW}, 288
        v_add_u32 v{vH94 + 3}, s{t}, v{vHr}
        """)
        for k in range(3):
            e(f"s_cmp_gt_u32 s{sW}, {k}\ns_cselect_b32 s{t}, 32, 0\nv_subrev_u32 v{vH94 + k}, s{t}, v{vH94 + 3}")
        e(f"""
        v_lshlrev_b32 v{a}, 6, v{m}
        v_lshl_add_u32 v{vPst}, v{g}, 4, v{a}
        v_lshrrev_b32 v{vPst9}, 1, v{vPst}
        v_add_u32 v{vPst9}, 20480, v{vPst9}
        v_lshrrev_b32 v{a}, 2, v{vLane}
        v_mul_u32_u24 v{a}, 288, v{a}
        v_and_b32 v{b}, 3, v{vLane}
        v_lshl_add_u32 v{vT1}, v{b}, 3, v{a}
        v_add_u32 v{vT1o}, {L_WO}, v{vT1}
        v_lshl_add_u32 v{vT2}, v{b}, 3, v{vT1o}
        """)
        e(f"""
        s_mul_i32 s{t}, s{sJ}, 28
        s_add_u32 s{t}, s{t}, s{sW}
        s_mul_i32 s{sW1}, s{t}, 5376
        s_add_u32 s{sW1}, s{sW1}, {WS_W1}
        s_lshl_b32 s{t}, s{sJ}, 2
        s_add_u32 s{t + 8}, s{t}, s{sW}
        s_mul_i32 s{sW2}, s{t + 8}, 36864
        s_add_u32 s{sW2}, s{sW2}, {WS_W2}
        s_mul_i32 s{sPc}, s{sG}, {9 * PSTR}
        s_add_u32 s{sPc}, s{sPc}, {WS_P}
        s_mul_i32 s{sP}, s{sJ}, {PSTR}
        s_add_u32 s{sP}, s{sP}, s{sPc}
        s_mul_i32 s{sGeO}, s{sQ}, 4608
        s_add_u32 s{sGeO}, s{sGeO}, {WS_GE}
        s_mov_b32 s{sC}, {f32(-C2)}
        s_mov_b32 s{sC + 1}, {f32(-C1)}
        s_mov_b32 s{sIS}, {f32(1.0 / S2)}
        s_mov_b32 s{sIS + 1}, {f32(1.0 / S2)}
        """)
        e(f"""
        s_cmp_lt_u32 s{sG}, 2
        s_cselect_b32 s{t}, 82944, 32
        v_bfe_u32 v{a}, v{vLane}, 1, 1
        v_mul_u32_u24 v{a}, s{t}, v{a}
        v_lshrrev_b32 v{b}, 2, v{vLane}
        v_mul_u32_u24 v{b}, 288, v{b}
        v_and_b32 v{c}, 1, v{vLane}
        v_lshlrev_b32 v{c}, 4, v{c}
        v_add3_u32 v{W2R}, v{a}, v{b}, v{c}
        s_lshl_b32 s{t}, s{sW}, 1
        s_add_u32 s{t}, s{t}, s{sG}
        s_lshl_b32 s{t}, s{t}, 1
        s_sub_u32 s{t + 1}, s{sG}, 2
        s_lshl_b32 s{t + 2}, s{sW}, 6
        s_cmp_lt_u32 s{sG}, 2
        s_cselect_b32 s{t}, s{t}, s{t + 1}
        s_cselect_b32 s{t + 2}, 256, s{t + 2}
        s_mul_i32 s{t}, s{t}, 82944
        s_mul_i32 s{t + 1}, s{sJ}, 4608
        s_add_u32 s{t}, s{t}, s{t + 1}
        s_add_u32 s{sG2}, s{t}, s{t + 2}
        s_lshl_b32 s{t}, s{sG}, 11
        s_add_u32 s{t}, s{t}, s{sW2}
        s_cmp_lt_u32 s{sG}, 18
        s_cselect_b32 s{sS2}, s{t}, 0x40000000
        s_cselect_b32 s{t + 2}, 1, 0
        v_lshlrev_b32 v{a}, 9, v{g}
        v_bfe_u32 v{b}, v{vLane}, 2, 2
        v_lshl_add_u32 v{a}, v{b}, 6, v{a}
        v_and_b32 v{b}, 3, v{vLane}
        v_lshl_add_u32 v{a}, v{b}, 3, v{a}
        s_lshl_b32 s{t}, s{sW}, 11
        s_add_u32 s{t}, s{t}, {L_RED + 8192}
        v_add_u32 v{W2T}, s{t}, v{a}
        s_lshl_b32 s{t}, s{sJ}, 2
        s_add_u32 s{t}, s{t}, s{sW}
        s_mul_i32 s{t}, s{t}, 18
        s_add_u32 s{t}, s{t}, {WS_FW2 // 128}
        v_min_u32 v{a}, 17, v{vLane}
        v_add_lshl_u32 v{vFlA}, v{a}, s{t}, 7
        s_add_u32 s{t}, s{t}, s{sG}
        s_lshl_b32 s{t}, s{t}, 7
        v_mov_b32 v{a}, s{t}
        v_mov_b32 v51, {BIG}
        v_cmp_gt_u32 vcc, s{t + 2}, v{vLane}
        v_cndmask_b32 v{W2F}, v51, v{a}, vcc
        """)
        self.presetup()

    def setup2(self):
        e = self.e
        t = sT
        m, g, a, b, c = 46, 47, 48, 49, 50
        e(f"""
        s_lshl_b32 s{t}, s{sJ}, 2
        s_add_u32 s{t + 8}, s{t}, s{sW}
        s_mul_i32 s{t}, s{t + 8}, 37
        s_lshr_b32 s{t}, s{t}, 8
        s_mul_i32 s{t + 1}, s{t}, 7
        s_sub_u32 s{t + 1}, s{t + 8}, s{t + 1}
        s_lshl_b32 s{t + 1}, s{t + 1}, 1
        s_cmp_eq_u32 s{t + 8}, 35
        s_cselect_b32 s{t}, 0, s{t}
        s_cselect_b32 s{t + 1}, 14, s{t + 1}
        s_cselect_b32 s{t + 2}, 512, 32
        s_cselect_b32 s{t + 3}, 1, 5
        s_lshl_b32 s{t + 4}, s{t}, 9
        s_lshl_b32 s{t + 5}, s{t + 1}, 5
        s_add_u32 s{t + 4}, s{t + 4}, s{t + 5}
        s_mul_i32 s{t + 5}, s{t + 1}, 5
        s_add_u32 s{t + 5}, s{t + 5}, s{t}
        s_mul_i32 s{t + 6}, s{sGi}, 72
        s_add_u32 s{t + 5}, s{t + 5}, s{t + 6}
        s_lshl_b32 s{t + 6}, s{t + 2}, 1
        s_lshl_b32 s{t + 7}, s{t + 4}, 1
        """)
        e(f"""
        v_lshrrev_b32 v{a}, 5, v{vLane}
        v_mul_u32_u24 v{a}, {PSTR}, v{a}
        v_bfe_u32 v{b}, v{vLane}, 3, 2
        v_mul_u32_u24 v{b}, 5120, v{b}
        v_add3_u32 v{a}, v{a}, v{b}, s{t + 7}
        v_bfe_u32 v{b}, v{vLane}, 2, 1
        v_mad_u32_u24 v{a}, v{b}, s{t + 6}, v{a}
        v_and_b32 v{c}, 3, v{vLane}
        v_lshl_add_u32 v{vPl}, v{c}, 4, v{a}
        v_cmp_gt_u32 vcc, 32, v{vLane}
        v_cndmask_b32 v{vPl4}, v51, v{vPl}, vcc
        v_mul_u32_u24 v{b}, 288, v{b}
        v_lshl_add_u32 v{b}, v{c}, 4, v{b}
        v_lshrrev_b32 v{a}, 5, v{vLane}
        v_lshl_add_u32 v{b}, v{a}, 7, v{b}
        v_bfe_u32 v{a}, v{vLane}, 4, 1
        v_lshl_add_u32 v{b}, v{a}, 3, v{b}
        v_bfe_u32 v52, v{vLane}, 3, 1
        v_lshl_add_u32 v{b}, v52, 6, v{b}
        s_mul_i32 s{t}, s{sW}, 640
        s_add_u32 s{t}, s{t}, {L_FS}
        v_add_u32 v{vFw}, s{t}, v{b}
        v_and_b32 v53, 7, v{vLane}
        v_mul_u32_u24 v{a}, {PSTR}, v{g}
        v_mad_u32_u24 v{a}, v52, s{t + 2}, v{a}
        v_lshl_add_u32 v{a}, v53, 2, v{a}
        s_add_u32 s{t + 4}, s{t + 4}, 20480
        v_add_u32 v{vPl9}, s{t + 4}, v{a}
        v_cmp_gt_u32_e64 s[{t + 7}:{t + 8}], 16, v{vLane}
        v_mul_u32_u24 v{a}, 288, v52
        v_add_u32 v{a}, s{t}, v{a}
        v_cndmask_b32_e64 v{vPl9b}, v51, v{vPl9}, s[{t + 7}:{t + 8}]
        v_lshl_add_u32 v{vFr}, v{g}, 4, v{a}
        v_add_u32 v{a}, 256, v{a}
        v_lshl_add_u32 v{vFr9}, v{g}, 3, v{a}
        v_lshl_add_u32 v{a}, v53, 2, v{a}
        v_lshl_add_u32 v{a}, v{g}, 1, v{a}
        s_add_u32 s{t}, s{t}, 512
        v_lshl_add_u32 v{b}, v{vLane}, 1, s{t}
        v_cndmask_b32 v{vFw9}, v{b}, v{a}, vcc
        v_lshlrev_b32 v{a}, 4, v53
        v_lshl_add_u32 v{vGe}, v{g}, 7, v{a}
        v_mov_b32 v{a}, s{t + 5}
        v_mad_u32_u24 v{a}, v52, s{t + 3}, v{a}
        v_cmp_gt_u32 vcc, 1000, v{a}
        s_mul_i32 s{t}, s{sB}, 1000
        v_add_u32 v{a}, s{t}, v{a}
        v_lshl_add_u32 v{a}, v{a}, 3, v53
        v_mul_u32_u24 v{a}, 288, v{a}
        v_cndmask_b32 v{a}, v51, v{a}, vcc
        v_lshl_add_u32 v{vOut}, v{g}, 4, v{a}
        v_add_u32 v{a}, 256, v{a}
        v_lshl_add_u32 v{vOut9}, v{g}, 3, v{a}
        """)
        e(f"""
        s_mul_i32 s{t}, s{sG}, 9
        v_add_u32 v{a}, s{t}, v{vLane}
        v_add_u32 v{b}, 243, v{vLane}
        v_min_u32 v{b}, 255, v{b}
        v_cmp_gt_u32 vcc, 9, v{vLane}
        s_movk_i32 s{t}, {WS_FCL // 128}
        v_cndmask_b32 v{a}, v{b}, v{a}, vcc
        v_add_lshl_u32 v{vFlC}, v{a}, s{t}, 7
        """)
        e(f"""
        v_and_b32 v{a}, 1, v{g}
        v_lshlrev_b32 v{a}, 3, v{a}
        v_sub_u32 v{a}, v{m}, v{a}
        v_and_b32 v{b}, 1, v{a}
        v_lshlrev_b32 v{b}, 4, v{b}
        v_mov_b32 v{c}, 0x3f80
        v_lshlrev_b32 v{b}, v{b}, v{c}
        v_lshrrev_b32 v{a}, 1, v{a}
        """)
        for q in range(4):
            e(f"v_cmp_eq_u32 vcc, {q}, v{a}\nv_mov_b32 v{vSent + q}, -1\nv_cndmask_b32 v{vAI + q}, 0, v{b}, vcc")
        e(f"""
        v_cmp_eq_u32 vcc, 0, v{m}
        v_lshlrev_b32 v{b}, 16, v{c}
        v_cndmask_b32 v{vA9}, 0, v{c}, vcc
        v_cmp_eq_u32 vcc, 4, v{m}
        v_cndmask_b32 v{vA9}, v{vA9}, v{b}, vcc
        v_mov_b32 v{vA9 + 1}, v{vA9}
        v_mov_b32 v{vA9 + 2}, v{vA9}
        v_mov_b32 v{vA9 + 3}, v{vA9}
        """)
        e(f"""
        s_mul_i32 s{t}, s{sW}, 640
        s_add_u32 s{t}, s{t}, 20480
        v_add_u32 v{a}, s{t}, v{vL16}
        v_cmp_gt_u32 vcc, 40, v{vLane}
        v_cndmask_b32 v{vClr}, v51, v{a}, vcc
        s_cmp_eq_u32 s{sW}, 0
        s_cselect_b32 s{t}, 0, {BIG}
        v_or_b32 v{vP94}, s{t}, v{vPst9}
        v_add_u32 v{a}, 2048, v{vPst}
        v_cmp_gt_u32 vcc, 14, v{m}
        v_cndmask_b32 v{vPstB}, v51, v{a}, vcc
        v_cmp_gt_u32 vcc, 15, v{m}
        v_cndmask_b32 v{vPst}, v51, v{vPst}, vcc
        """)
        if self.tch:
            e(f"""
            s_lshr_b32 s{t}, s2, 3
            s_lshl_b32 s{t}, s{t}, 2
            s_add_u32 s{t}, s{t}, s{sW}
            s_mul_i32 s{t}, s{t}, 6
            v_min_u32 v{a}, 5, v{vLane}
            v_add_lshl_u32 v{vTch}, v{a}, s{t}, 6
            """)

    def presetup(self):
        e = self.e
        m, g, a = 46, 47, 48
        e(f"""
        v_add_u32 v{vL16b}, 4096, v{vL16}
        v_lshlrev_b32 v{vChk}, 2, v{vLane}
        v_add_u32 v{vChk}, 5120, v{vChk}
        """)
        e(f"v_lshlrev_b32 v{a}, 8, v{g}\nv_lshl_add_u32 v{a}, v{m}, 3, v{a}\nv_add_u32 v54, {L_RED}, v{a}")
        e(f"s_mul_i32 s{sN}, s{sN}, 1664525\ns_add_u32 s{sN}, s{sN}, 1013904223\nv_mov_b32 v{W2N}, s{sN}")

    def checksum(self, base):
        L = []
        for i in range(10):
            prev = f"s{sN}" if i == 0 else f"v{vCs}"
            L.append(f"v_add3_u32 v{vCs}, v{base + 2 * i}, v{base + 2 * i + 1}, {prev}")
        return L

    def produce(self):
        e = self.e
        t = sT
        R = 56
        if self.xt == 3:
            self.xtouch()
        self.stamp("setup", 3)
        if self.nb:
            e("s_barrier")
        e(f"s_cmp_eq_u32 s{sW}, 0\ns_cbranch_scc0 L_p1")
        snap = e.snapshot()
        t = 21
        e.wait(vm=len(e.vm))
        for i in range(5):
            for h in range(2):
                e(f"ds_read_b64_tr_b16 {vr(R + 4 * i + 2 * h, 2)}, v54 offset:{1024 * i + 128 * h}")
        cs = self.checksum(R)
        for i in range(5):
            a, o = (vL16, 1024 * i) if i < 4 else (vL16b, 0)
            e(f"buffer_store_dwordx4 {vr(R + 4 * i)}, v{a}, {srd(SWS)}, s{t} offen offset:{o} sc1")
            e(cs[2 * i])
            e(cs[2 * i + 1])
        e(f"buffer_store_dword v{vCs}, v{vChk}, {srd(SWS)}, s{t} offen sc1")
        e.label("L_p1")
        e.restore(snap)
        e.hist = []
        if self.gate:
            e("s_barrier")
        self.stamp("prod", 3)

    def w1_loads(self, c, soff):
        b = WBUF + 20 * (c % 3)
        L = []
        for i in range(5):
            a, o = (vL16, 1024 * i) if i < 4 else (vL16b, 0)
            L.append(f"buffer_load_dwordx4 {vr(b + 4 * i)}, v{a}, {srd(SWS)}, s{soff} offen offset:{o} sc1")
        L.append(f"buffer_load_dword v{WCHK + c % 3}, v{vChk}, {srd(SWS)}, s{soff} offen sc1")
        return L

    def add_stub(self, name, body):
        self.stubs.append((name, body))

    def w1_check(self, c):
        e = self.e
        e(f"v_cmp_ne_u32 vcc, v{vCs}, v{WCHK + c % 3}")
        e(f"s_cbranch_vccnz L_r1_{c}")
        e.label(f"L_r1_{c}_back")

        def body():
            for cc in range(c, min(c + 1 + self.both, 7)):
                e(f"s_add_u32 s{sT + 8}, s{sW1}, {21504 * cc}")
                for l in self.w1_loads(cc, sT + 8):
                    e(l)
            e.wait(vm=0)
            for l in self.checksum(WBUF + 20 * (c % 3)):
                e(l)
            e(f"v_cmp_ne_u32 vcc, v{vCs}, v{WCHK + c % 3}")
        self.add_stub(f"L_r1_{c}", body)

    def flag_check(self, name, vaddr, vdata):
        e = self.e
        e(f"v_cmp_ne_u32 vcc, s{sN}, v{vdata}")
        e(f"s_cbranch_vccnz {name}")
        e.label(f"{name}_back")

        def body():
            e(f"buffer_load_dword v{vdata}, v{vaddr}, {srd(SWS)}, 0 offen sc1")
            e.wait(vm=0)
            e(f"v_cmp_ne_u32 vcc, s{sN}, v{vdata}")
        self.add_stub(name, body)

    def xb_item(self, k):
        fl = self.xfl if self.bfl is None else self.bfl
        if k < 12:
            if self.rotb:
                if k == 0:
                    pre = f"s_mov_b32 m0, s{sXb}"
                elif k % 3:
                    pre = f"s_add_u32 m0, s{sXb}, {1024 * (k % 3)}\nv_add_u32 v{vXb}, 9216, v{vXb}"
                else:
                    pre = (f"s_cmp_eq_u32 s{sXb}, s{sXl}\ns_cselect_b32 s{sXm}, s{sK1}, 3072\ns_add_u32 s{sXb}, s{sXb}, s{sXm}\n"
                           f"s_mov_b32 m0, s{sXb}\ns_mul_i32 s{sXm}, s{sXm}, 9\ns_sub_u32 s{sXm}, s{sXm}, 18432\nv_add_u32 v{vXb}, s{sXm}, v{vXb}")
            else:
                pre = f"s_add_u32 m0, s{sXb}, {1024 * k}" + (f"\nv_add_u32 v{vXb}, 9216, v{vXb}" if k else "")
            return pre, f"buffer_load_dwordx4 v{vXb}, {srd(SX)}, 0 offen {fl} lds"
        pre = f"s_add_u32 m0, s{sXc}, {1024 * (k - 12)}" + (f"\nv_add_u32 v{vXc}, 9216, v{vXc}" if k > 12 else "")
        return pre, f"buffer_load_dwordx4 v{vXc}, {srd(SX)}, 0 offen {fl} lds"

    def clears(self):
        t = sT
        L = [f"buffer_store_dwordx4 {vr(vSent)}, v{vPst if c < 2 else vPstB}, {srd(SWS)}, s{t + 5} offen offset:{1024 * c - (2048 if c >= 2 else 0)} sc1" for c in range(5)]
        return L + [f"buffer_store_dwordx4 {vr(vSent)}, v{vClr}, {srd(SWS)}, s{sP} offen sc1"]

    def conv1(self):
        e = self.e
        t = sT
        K = self.tok = {}
        K["A"] = self.x_loop("L_x2", 12 - self.n1)
        self.stamp("x2", 3)
        if self.rotb:
            e(f"""
            s_add_u32 s{sXl}, s{sXb}, 9216
            s_movk_i32 s{sK1}, {-9216}
            s_and_b32 s{t}, s{sJ}, 3
            s_mul_i32 s{t}, s{t}, 3072
            s_add_u32 s{sXb}, s{sXb}, s{t}
            s_mul_i32 s{t}, s{t}, 9
            v_add_u32 v{vXb}, s{t}, v{vXb}
            """)
        nb = 0
        VM = []
        late = False
        for it in self.pre.split():
            L = []
            if it == "|":
                late = True
            elif it[0] == "c":
                c = int(it[1])
                for k, l in enumerate(self.w1_loads(c, t if c else sW1)):
                    L.append((f"s_add_u32 s{t}, s{sW1}, {21504 * c}" if c and not k else "", l, None, 55 * c - 30))
            elif it[0] == "B":
                for _ in range(int(it[1:])):
                    L.append(self.xb_item(nb) + ("X%d" % nb, self.bdl))
                    nb += 1
            elif it == "g2":
                L.append((f"s_lshl_b32 m0, s{sW}, 11\ns_add_u32 m0, m0, {L_RED + 8192}", f"buffer_load_dwordx4 v{W2R}, {srd(SW2R)}, s{sG2} offen {self.gfl} lds", None, self.w2pos[0]))
                L.append((f"s_add_u32 s{t + 1}, s{sG2}, {41472 - 1024}", f"buffer_load_dwordx4 v{W2R}, {srd(SW2R)}, s{t + 1} offen offset:1024 {self.gfl} lds", "g2", self.w2pos[0]))
            elif it == "S":
                self.setup2()
            for a, b, name, dl in L:
                if late:
                    VM.append((0, ([F(a, 0)] if a else []) + [F(b, 0, dl, cb=(lambda tok, name=name: K.__setitem__(name, tok)))]))
                else:
                    e(a)
                    K[name] = e(b)
            if not late:
                self.stamp("p" + it)
        assert nb == 12
        self.stamp("iss")
        if "S" not in self.pre.split():
            self.setup2()
        self.stamp("set2")
        e.wait_tok(K["A"])
        self.stamp("xland")
        seq = sorted([(s, r) for s in range(5) for r in range(11)], key=lambda x: (x[0] + x[1], x[0]))
        seq += [(s, r) for s in range(5, 31) for r in range(11)]
        seq += [(s, r) for r in range(11) for s in range(31, 35)]

        def frag(s, r):
            if s < 16:
                return (0, r + s)
            if s < 31:
                return (1, r + s - 16)
            return (2, r + s - 31)
        first, last = {}, {}
        for i, (s, r) in enumerate(seq):
            f = frag(s, r)
            first.setdefault(f, i)
            last[f] = i
        order = sorted(first, key=lambda f: first[f])
        free = [(-1, k) for k in range(NSLOT)]
        slot = {}
        rd = []
        LEAD = 26
        for n, f in enumerate(order):
            free.sort()
            avail, k = free.pop(0)
            slot[f] = k
            free.append((last[f], k))
            pos = max(avail, first[f] - LEAD, 0)
            if f[0] == 1 and f[1] <= 10:
                pos = max(avail, first[(1, 0)] - self.lb + (self.lb - 10) * f[1] // 11)
            if n < 5:
                pos = -1
            a, o = [(vXa0, 0), (vXa0, L_XB), (vXa2, 0)][f[0]]
            rd.append((pos, f, F(f"ds_read_b128 {vr(RING + 4 * k)}, v{a} offset:{o + 64 * f[1]}", pos, max(first[f] - 8, pos + 1), lds=32)))
        rd.sort(key=lambda x: x[0])
        RD = []
        for pos, f, it in rd:
            if f == (1, 0):
                RD.append(F((lambda: e.wait_tok(K["X11"])), pos, cost=4))
            if f == (2, 0):
                def barc():
                    e.wait_tok(K["X14"])
                    e("s_barrier")
                assert self.barc <= pos
                RD.insert(max(q for q, x in enumerate(RD) if x.pos <= self.barc) + 1, F(barc, self.barc, cost=4))
            RD.append(it)
        CK = [F(l, -1) for l in self.checksum(WBUF)]
        CK += [F(lambda: self.w1_check(0), -1), F(lambda: self.stamp("c0ok"), -1)]
        for k in range(12, 15):
            a, b = self.xb_item(k)
            pos = self.cpos + 4 * (k - 12)
            VM.append((pos, [F(a, pos), F(b, pos, self.barc - 60, cb=(lambda tok, k=k: K.__setitem__("X%d" % k, tok)))]))
        for c in range(7):
            base = 55 * c
            if c + 2 < 7 and c:
                for k, l in enumerate(self.w1_loads(c + 2, t)):
                    pos = base + 4 * k
                    VM.append((pos, ([F(f"s_add_u32 s{t}, s{sW1}, {21504 * (c + 2)}", max(pos - 3, 0))] if k == 0 else []) + [F(l, pos, base + 80)]))
            if c < 6:
                for k, l in enumerate(self.checksum(WBUF + 20 * ((c + 1) % 3))):
                    CK.append(F(l, base + 38 + k // 2))
                CK.append(F((lambda c=c: self.w1_check(c + 1)), base + 48, base + 55, cost=8))
                CK.append(F((lambda c=c: self.stamp(f"c{c + 1}ok", 2)), base + 48, base + 55))
        pA, pB, pC, pD = self.w2pos
        W2 = [F((lambda: e.wait_tok(K["g2"])), pA, cost=4)]
        for ab in range(2):
            for h in range(2):
                W2.append(F(f"ds_read_b64_tr_b16 {vr(W2D + 4 * ab + 2 * h, 2)}, v{W2T} offset:{32 * ab + 256 * h}", pA, pA + 9))
        for ab in range(2):
            VM.append((pA + 12 + 8 * ab, [F(f"buffer_store_dwordx4 {vr(W2D + 4 * ab)}, v{vL16}, {srd(SWS)}, s{sS2} offen offset:{1024 * ab} sc1",
                                           pA + 12, cb=(lambda tok: K.__setitem__("w2st", tok)))]))
        VM.append((pB, [F((lambda: e.wait_tok(K["w2st"])), pB, cost=4), F(f"buffer_store_dword v{W2N}, v{W2F}, {srd(SWS)}, 0 offen sc1", pB)]))
        VM.append((pC, [F(f"buffer_load_dword v205, v{vFlA}, {srd(SWS)}, 0 offen sc1", pC)]))
        if self.tch:
            VM.append((self.tch, [F(f"buffer_load_dword v{vTch + 1}, v{vTch}, {srd(SWF)}, 0 offen", self.tch),
                                  F(f"buffer_load_dword v{vTch + 2}, v{vTch}, {srd(SWO)}, 0 offen", self.tch)]))
        VM.append((pD, [F(lambda: self.stamp("preW2", 2), pD), F(lambda: self.flag_check("L_r2", vFlA, 205), pD, cost=8), F(lambda: self.stamp("W2", 2), pD)]))
        self.w2late = []
        for p in range(36):
            L = []
            if p % 4 == 0:
                L.append(f"s_add_u32 s{t + 2}, s{sW2}, {1024 * p}")
            L.append(f"buffer_load_dwordx4 {ar(A_W2 + 4 * p)}, v{vL16}, {srd(SWS)}, s{t + 2} offen offset:{1024 * (p % 4)} sc1")
            if p < 36 - self.nlate:
                VM.append((pD + 1 + 4 * p, [F(l, pD, 386, cb=(lambda tok: K.__setitem__("w2ld", tok))) for l in L]))
            else:
                self.w2late.append("\n".join(L))
        VM.append((0, [F(f"s_mul_i32 s{t + 5}, s{sW}, 5120\ns_add_u32 s{t + 5}, s{t + 5}, s{sP}", 0)]))
        if self.clr and self.clr != -1:
            for c, l in enumerate(self.clears()):
                VM.append((self.clr[c], [F(l, self.clr[c], cb=(lambda tok: K.__setitem__("clr", tok)))]))
        VM.sort(key=lambda x: x[0])
        VM = [f for _, L in VM for f in L]
        WR = [F(f"ds_write_b128 v{vRedW}, {ar(A_ACC + 4 * r)} offset:{1024 * r}", 341 + 4 * r + 3 + 5) for r in range(11)]
        mf = []
        for s, r in seq:
            w = WBUF + 20 * ((s // 5) % 3) + 4 * (s % 5)
            acc = ar(A_ACC + 4 * r)
            mf.append(f"v_mfma_f32_16x16x32_bf16 {acc}, {vr(w)}, {vr(RING + 4 * slot[frag(s, r)])}, {acc if s else '0'}")
        S = [RD, CK, W2, WR, VM]
        self.posstamps("u", S)
        weave2(e, mf, S, log=self.log and "conv1")
        if self.log:
            print("  vm at:", [f.at for f in VM if not callable(f.item) and f.item.startswith("buffer")])

    def dma_w(self, s, ldsbase):
        t = sT
        L = []
        for k in range(11):
            pre = ""
            if k % 4 == 0:
                pre = f"s_add_u32 s{t + 4}, s{t + 3}, {1024 * k}\ns_add_u32 m0, s{t + 3}, {ldsbase + 1024 * k}"
            L.append((pre, f"buffer_load_dwordx4 v{vL16}, {srd(s)}, s{t + 4} offen offset:{1024 * (k % 4)} lds"))
        return L

    def transition(self):
        e = self.e
        t = sT
        K = self.tok
        self.stamp("c1end", 2)
        e(f"s_mul_i32 s{t + 3}, s{sW}, 11264")
        e.wait(lg=0)
        e("s_barrier")
        self.stamp("B2")
        R = RING
        q = [(l, None) for l in self.w2late]
        for it in self.trq:
            if it == "c" and not self.clr:
                q += [(l, "clr") for l in self.clears()]
            if it == "f":
                q += [((a + "\n" + b).strip(), "wf") for a, b in self.dma_w(SWF, L_WF)]
            if it == "o":
                q += [((a + "\n" + b).strip(), "wo") for a, b in self.dma_w(SWO, L_WO)]
        self.vq = q
        real = self.e
        clock = dict(t=0, ta=0, n=0)

        def ee(text):
            for l in text.split("\n"):
                real(l)
                clock["t"] += icost(Ins(l))
                if q and clock["n"] < self.trd and clock["t"] >= clock["ta"]:
                    l2, name = q.pop(0)
                    K[name] = real(l2)
                    clock["n"] += 1
                    st = "store" in l2
                    clock["ta"] = clock["t"] + (128 if st else 64)
                    clock["t"] += 29 if st else 12
        for k in range(3):
            for s_ in range(4):
                e(f"ds_read_b128 {vr(R + 16 * k + 4 * s_)}, v{vRedR} offset:{11264 * s_ + 1024 * k}")
        if q and self.trd:
            l2, name = q.pop(0)
            K[name] = e(l2)
            clock["n"] += 1
        self.e = ee
        for k in range(3):
            b = R + 16 * k
            for h in (0, 2):
                ee(f"v_pk_add_f32 {vr(b + h, 2)}, {vr(b + h, 2)}, {vr(b + 4 + h, 2)}")
                ee(f"v_pk_add_f32 {vr(b + 8 + h, 2)}, {vr(b + 8 + h, 2)}, {vr(b + 12 + h, 2)}")
            for h in (0, 2):
                ee(f"v_pk_add_f32 {vr(b + h, 2)}, {vr(b + h, 2)}, {vr(b + 8 + h, 2)}")
        pairs = [R + 16 * k + h for k in range(3) for h in (0, 2)]
        self.gelu_pairs(pairs, [p + 4 for p in pairs])
        self.e = real
        for k in range(3):
            b = R + 16 * k
            e(f"v_cvt_pk_bf16_f32 v{b}, v{b}, v{b + 1}\nv_cvt_pk_bf16_f32 v{b + 1}, v{b + 2}, v{b + 3}")
            e(f"v_cndmask_b32_e64 v{b}, 0, v{b}, s[{sMask + 2 * k}:{sMask + 2 * k + 1}]")
            e(f"v_cndmask_b32_e64 v{b + 1}, 0, v{b + 1}, s[{sMask + 2 * k}:{sMask + 2 * k + 1}]")
            e(f"ds_write_b64 v{vHw3 + k}, {vr(b, 2)}")
        e.wait_tok(K["w2ld"])
        e.wait(lg=0)
        self.stamp("gelu", 2)
        e("s_barrier")
        self.stamp("B3", 2)

    def wf_reg(self, eps, s):
        if s < 4:
            i = 4 * (4 * eps + s)
            return ("a", A_WF + i) if i < 112 else ("v", VWF + i - 112)
        return ("v", VWF + 32 + 2 * eps)

    def wo_reg(self, tile, s):
        if s < 4:
            return ("a", 4 * (9 * s + tile))
        return ("v", 46 + 2 * tile)

    @staticmethod
    def rr(fb, off, n):
        return f"{fb[0]}[{fb[1] + off}:{fb[1] + off + n - 1}]"

    def conv2(self):
        e = self.e
        t = sT
        K = self.tok
        BM, B9, ACC9, TMP, ACC = 46, 126, 162, 182, 190
        mf = []
        n9 = sorted([(k, r) for k in range(4) for r in range(5)], key=lambda x: (x[0] + x[1], x[0]))
        for k, r in n9:
            acc = vr(ACC9 + 4 * r)
            mf.append(f"v_mfma_f32_16x16x32_bf16 {acc}, {ar(A_W2 + 4 * k)}, {vr(B9 + 4 * (r + k))}, {acc if k else '0'}")
        for r in range(5):
            for k in range(16):
                for ab in range(2):
                    acc = vr(ACC + 8 * (r & 1) + 4 * ab)
                    mf.append(f"v_mfma_f32_16x16x32_bf16 {acc}, {ar(A_W2 + 16 + 8 * k + 4 * ab)}, {vr(BM + 4 * (r + k))}, {acc if k else '0'}")
        RD = []
        for i in range(8):
            dl = min(n for n, (k, r) in enumerate(n9) if k + r == i)
            RD.append(F(f"ds_read_b128 {vr(B9 + 4 * i)}, v{vH94 + [0, 1, 2, 3, 3, 0, 1, 2][i]} offset:{64 * i + (32 if i > 4 else 0)}",
                        -1 if i < 4 else 0, max(dl - 6, 1)))
        for i in range(20):
            dl = 20 + 2 * i if i < 16 else 20 + 32 * (i - 15) + 30
            RD.append(F(f"ds_read_b128 {vr(BM + 4 * i)}, v{vHr} offset:{64 * i + 32 * (i // 5)}", 0, dl - 8))
        PB = self.pb
        N9 = [F(f"ds_write_b128 v{vN9W}, {vr(ACC9 + 4 * r)} offset:{1024 * r}", 30 + 5 * r, PB - 6) for r in range(5)]
        VM = []
        for n, (l, name) in enumerate(self.vq):
            L = l.split("\n")
            if len(L) > 1:
                VM.append(F("\n".join(L[:-1]), 0))
            VM.append(F(L[-1], 0, {"clr": 40, "wf": PB - 20, "wo": 150, None: 10}[name], cb=(lambda tok, name=name: K.__setitem__(name, tok))))
        PS = [F(f"s_lshl_b32 s{t + 2}, s{sW}, 9\ns_add_u32 s{t + 2}, s{t + 2}, s{sP}", 40),
              F(f"s_mul_i32 s{t}, s{sG}, 9\ns_add_u32 s{t}, s{t}, s{sJ}\ns_lshl_b32 s{t}, s{t}, 7", 40),
              F(f"s_add_u32 s{t}, s{t}, {WS_FCL}\nv_mov_b32 v{vCs}, s{sN}", 40),
              F(lambda: e.wait_tok(K["clr"]) if "clr" in K else None, 50, cost=4)]
        for r in range(5):
            end = 20 + 32 * r + 31
            a = ACC + 8 * (r & 1)
            d = TMP + 4 * (r & 1)
            for q in range(4):
                PS.append(F(f"v_cvt_pk_bf16_f32 v{d + q}, v{a + 2 * q}, v{a + 2 * q + 1}", end + 4, end + 24))
            va, o = (vPst, 1024 * r) if r < 2 else (vPstB, 1024 * r - 2048)
            PS.append(F(f"buffer_store_dwordx4 {vr(d)}, v{va}, {srd(SWS)}, s{t + 5} offen offset:{o} sc1", end + 4, end + 26,
                        cb=(lambda tok: K.__setitem__("pst", tok))))

        def bar4():
            self.stamp("preB4", 2)
            e.wait_tok(K["wf"])
            e.wait(lg=0)
            e("s_barrier")
            self.stamp("B4", 2)
        b4 = F(bar4, PB, PB + 1, cost=8)
        N9.append(b4)

        def flag():
            e(f"s_cmp_eq_u32 s{sW}, 0\ns_cbranch_scc0 L_nf\ns_mov_b64 exec, 1")
            e(f"buffer_store_dword v{vCs}, off, {srd(SWS)}, s{t} sc1")
            e.vm.pop()
            e("s_mov_b64 exec, -1")
            e.label("L_nf")
        N9.append(F(flag, PB + 1, PB + 2, cost=8))
        for s_ in range(4):
            N9.append(F(f"ds_read_b128 {vr(B9 + 4 * s_)}, v{vN9R} offset:{5120 * s_}", PB + 2, PB + 20))
        for s_ in range(4):
            N9.append(F(f"ds_read_b128 {vr(B9 + 16 + 4 * s_)}, v{vRedL} offset:{5120 * s_ + 4096}", PB + 2, PB + 20))
        p = PB + 20
        for hb in (B9, B9 + 16):
            for q in range(4):
                N9.append(F(f"v_add_f32 v{hb + q}, v{hb + q}, v{hb + 4 + q}", p))
                N9.append(F(f"v_add_f32 v{hb + 8 + q}, v{hb + 8 + q}, v{hb + 12 + q}", p))
            for q in range(4):
                N9.append(F(f"v_add_f32 v{hb + q}, v{hb + q}, v{hb + 8 + q}", p))
            N9.append(F(f"v_cvt_pk_bf16_f32 v{hb}, v{hb}, v{hb + 1}", p))
            N9.append(F(f"v_cvt_pk_bf16_f32 v{hb + 1}, v{hb + 2}, v{hb + 3}", p))
        N9.append(F(f"buffer_store_dwordx2 {vr(B9, 2)}, v{vPst9}, {srd(SWS)}, s{t + 2} offen sc1", p, 172))
        N9.append(F(f"buffer_store_dwordx2 {vr(B9 + 16, 2)}, v{vP94}, {srd(SWS)}, s{sP} offen offset:2048 sc1", p, 176, ta=16))
        WF = []
        for eps in range(9):
            for s_ in range(5):
                fb = self.wf_reg(eps, s_)
                for h in range(2 if s_ < 4 else 1):
                    WF.append(F(f"ds_read_b64_tr_b16 {self.rr(fb, 2 * h, 2)}, v{vT1} offset:{L_WF + (32 * s_ + 16 * h) * 288 + 32 * eps}", PB + 1, after=(b4, 1)))
        self.wf_left = [f.item for f in WF[81 - self.wfl:]]
        WF = WF[:81 - self.wfl]
        WF[-1].dl = 180
        FL = [F(f"v_mov_b32 v{vSent + q}, 0x3f803f80", PB + 2) for q in range(4)]
        FL.append(F(f"buffer_load_dword v{vCs}, v{vFlC}, {srd(SWS)}, 0 offen sc1", self.fpos, self.fpos + 6))
        S = [RD, PS, VM, N9, FL, WF]
        self.posstamps("v", S)
        weave2(e, mf, S, log=self.log and "conv2", soft=[WF])
        if self.log:
            print("  vm at:", [f.at for f in VM if f.item.startswith("buffer")], "wf", WF[0].at, WF[-1].at, "n9", N9[-1].at)

    def joint(self):
        e = self.e
        t = sT
        K = self.tok
        Z, PL, D, FB, TM, JP, OA, OP = 126, 64, 88, 96, 114, 64, 170, 96
        self.stamp("c2end")
        e.wait_tok(K["wo"])
        e("s_barrier")
        self.stamp("B5", 2)
        self.flag_check("L_r3", vFlC, vCs)
        self.stamp("F", 2)
        ge = [f"buffer_load_dwordx4 {vr(Z + 4 * eps)}, v{vGe}, {srd(SWS)}, s{sGeO} offen offset:{512 * (eps & 7)} sc1" for eps in range(9)]
        ge[8] = f"s_add_u32 s{sGeO}, s{sGeO}, 4096\n" + ge[8]

        def ploads():
            for L in range(5):
                e(f"s_add_u32 s{t}, s{sPc}, {2 * PSTR * L}")
                e(f"buffer_load_dwordx4 {vr(PL + 4 * L)}, v{vPl if L < 4 else vPl4}, {srd(SWS)}, s{t} offen sc1")
            for N in range(3):
                e(f"s_add_u32 s{t}, s{sPc}, {4 * PSTR * N}")
                e(f"buffer_load_dword v{PL + 20 + N}, v{vPl9 if N < 2 else vPl9b}, {srd(SWS)}, s{t} offen sc1")

        def pcheck():
            e(f"v_max3_u32 v{vCs}, v{PL}, v{PL + 1}, v{PL + 2}")
            for i in range(10):
                e(f"v_max3_u32 v{vCs}, v{vCs}, v{PL + 3 + 2 * i}, v{PL + 4 + 2 * i}")
            e(f"v_cmp_eq_u32 vcc, -1, v{vCs}")
        e(f"v_mov_b32 v{PL + 23}, 0")
        reads, mf = list(self.wf_left), []
        for s in range(5):
            for tile in range(9):
                fb = self.wo_reg(tile, s)
                for h in range(2 if s < 4 else 1):
                    row = (32 * s + 16 * h) * 288
                    if tile < 8:
                        reads.append(f"ds_read_b64_tr_b16 {self.rr(fb, 2 * h, 2)}, v{vT2} offset:{row + 64 * (tile >> 1) + 8 * (tile & 1)}")
                    else:
                        reads.append(f"ds_read_b64_tr_b16 {self.rr(fb, 2 * h, 2)}, v{vT1o} offset:{row + 256}")
                acc = vr(OA + 4 * tile)
                if s < 4:
                    mf.append((len(reads), f"v_mfma_f32_16x16x32_bf16 {acc}, {self.rr(fb, 0, 4)}, {vr(vSent)}, {acc if s else '0'}"))
                else:
                    mf.append((len(reads), f"v_mfma_f32_16x16x16_bf16 {acc}, {self.rr(fb, 0, 2)}, {vr(vSent, 2)}, {acc}"))
        mi = 0
        for i, l in enumerate(reads):
            if i == self.plpos:
                self.stamp("prePL", 2)
                e.wait_tok(K["pst"])
                self.stamp("PL", 2)
                ploads()
            if ge and i % self.gestep == 0 and not self.plpos - 4 < i < self.plpos + 8:
                e(ge.pop(0))
            e(l)
            while mi < len(mf) and mf[mi][0] + 12 <= i + 1:
                e(mf[mi][1])
                mi += 1
        while mi < len(mf):
            e(mf[mi][1])
            mi += 1
        assert not ge
        self.stamp("cs", 2)
        pcheck()
        e("s_cbranch_vccnz L_r4")
        e.label("L_r4_back")

        def body():
            ploads()
            e.wait(vm=0)
            pcheck()
        self.add_stub("L_r4", body)
        self.stamp("pok")
        e(f"v_mfma_f32_16x16x32_bf16 {vr(D + 4)}, {vr(vA9)}, {vr(PL + 20)}, 0")
        for L in range(5):
            e(f"v_mfma_f32_16x16x32_bf16 {vr(D)}, {vr(vAI)}, {vr(PL + 4 * L)}, {vr(D) if L else '0'}")
        e(f"s_or_b32 s{t}, s{sG}, s{sJ}\ns_or_b32 s{t}, s{t}, s{sW}\ns_cmp_eq_u32 s{t}, 0\ns_cbranch_scc0 L_ne")
        snap = e.snapshot()
        e(f"v_mov_b32 v{vCs}, s{sN}\ns_mov_b64 exec, 1")
        e(f"buffer_store_dword v{vCs}, off, {srd(SWS)}, 0 sc1")
        e("s_mov_b64 exec, -1")
        e.label("L_ne")
        e.restore(snap)
        self.gelu_pairs([D + 4, D, D + 2], [TM, TM + 2, TM + 4], scaled=True)
        e(f"v_cvt_pk_bf16_f32 v{D + 4}, v{D + 4}, v{D + 4}")
        e(f"v_cvt_pk_bf16_f32 v{D}, v{D}, v{D + 1}\nv_cvt_pk_bf16_f32 v{D + 1}, v{D + 2}, v{D + 3}")
        e(f"ds_write_b16 v{vFw9}, v{D + 4}\nds_write_b64 v{vFw}, {vr(D, 2)}")
        e(f"ds_read_b64 {vr(FB + 16, 2)}, v{vFr9}")
        for s in range(4):
            e(f"ds_read_b128 {vr(FB + 4 * s)}, v{vFr} offset:{64 * s}")
        self.stamp("fb", 2)
        M = []
        V = []
        zend = {}
        tend = {}
        n = 0
        for eps in range(9):
            n += 14
            tend[eps] = n
        order = ["H0", "H1", "H2", "H3", "H4", "H5", "Z0", "Z1", "Z2", "H6", "H7", "H8", "Z3", "Z4", "O0", "Z5", "Z6", "O1",
                 "Z7", "Z8", "O2", "O3", "O4"]
        oend = {}
        for it in order:
            k = int(it[1])
            if it[0] == "H":
                acc = vr(Z + 4 * k)
                M.append((f"v_mfma_f32_16x16x16_bf16 {acc}, {self.rr(self.wf_reg(k, 4), 0, 2)}, {vr(FB + 16, 2)}, {acc}", 0))
            elif it[0] == "Z":
                acc = vr(Z + 4 * k)
                for s in range(4):
                    fb = self.wf_reg(k, s)
                    M.append((f"v_mfma_f32_16x16x32_bf16 {acc}, {self.rr(fb, 0, 4)}, {vr(FB + 4 * s)}, {acc}", 0))
                zend[k] = len(M)
            else:
                for tile in range(9):
                    fb = self.wo_reg(tile, k)
                    acc = vr(OA + 4 * tile)
                    if k < 4:
                        M.append((f"v_mfma_f32_16x16x32_bf16 {acc}, {self.rr(fb, 0, 4)}, {vr(JP + 4 * k)}, {acc}", tend[2 * k + 1]))
                    else:
                        M.append((f"v_mfma_f32_16x16x16_bf16 {acc}, {self.rr(fb, 0, 2)}, {vr(JP + 16, 2)}, {acc}", tend[8]))
                    oend[tile] = len(M)
        for eps in range(9):
            z = Z + 4 * eps
            for q in range(4):
                V.append((f"v_exp_f32 v{z + q}, v{z + q}", 2, zend[eps] + (5 if eps == 0 else 3)))
            for q in range(4):
                V.append((f"v_fma_f32 v{z + q}, v{z + q}, -0.5, -0.5", 1, 0))
            for q in range(4):
                V.append((f"v_rcp_f32 v{z + q}, v{z + q}", 2, 0))
            V.append((f"v_cvt_pk_bf16_f32 v{JP + 2 * eps}, v{z}, v{z + 1}", 1, 0))
            V.append((f"v_cvt_pk_bf16_f32 v{JP + 2 * eps + 1}, v{z + 2}, v{z + 3}", 1, 0))
        fl = self.outflags
        for p in range(5):
            tiles = (2 * p, 2 * p + 1) if p < 4 else (8,)
            for i, tile in enumerate(tiles):
                a = OA + 4 * tile
                rdy = min(oend[tile] + 4, len(M))
                V.append((f"v_cvt_pk_bf16_f32 v{OP + 4 * p + 2 * i}, v{a}, v{a + 1}", 1, rdy))
                V.append((f"v_cvt_pk_bf16_f32 v{OP + 4 * p + 2 * i + 1}, v{a + 2}, v{a + 3}", 1, rdy))
            if p < 4:
                V.append((f"buffer_store_dwordx4 {vr(OP + 4 * p)}, v{vOut}, {srd(SOUT)}, 0 offen offset:{64 * p} {fl}", 1, 0))
            else:
                V.append((f"buffer_store_dwordx2 {vr(OP + 16, 2)}, v{vOut9}, {srd(SOUT)}, 0 offen {fl}", 1, 0))
        mi = vi = 0
        credit = 0.0
        while mi < len(M) or vi < len(V):
            m_ok = mi < len(M) and M[mi][1] <= vi
            v_ok = vi < len(V) and V[vi][2] <= mi
            if m_ok and (credit <= 0 or not v_ok):
                e(M[mi][0])
                mi += 1
                credit = min(credit, 0) + 2.7
            else:
                assert v_ok, (mi, vi)
                e(V[vi][0])
                credit -= V[vi][1]
                vi += 1

    def epilogue(self):
        e = self.e
        if self.stamps:
            self.stamp("issued")
            e.wait(vm=0)
            self.stamp("drained")
            e("s_memrealtime s[62:63]")
            e.wait(lg=0)
            for i in range(13):
                e(f"v_mov_b32 v{46 + i}, s{self.SLOTS[i]}")
            e(f"v_mov_b32 v74, s96\nv_mov_b32 v75, s62\nv_mov_b32 v76, s{sSpin}\nv_mov_b32 v77, s94")
            e(f"s_lshl_b32 s61, s2, 2\ns_add_u32 s61, s61, s{sW}\ns_lshl_b32 s61, s61, 7\ns_add_u32 s61, s61, {WS_DBG}")
            e("s_mov_b64 exec, 1")
            for i in range(8):
                e(f"buffer_store_dwordx4 {vr(46 + 4 * i)}, off, {srd(SWS)}, s61 offset:{16 * i}")
            if self.dbgwg is not None:
                self.mk_srd(SW1R, 20, 256)
                e(f"s_cmp_eq_u32 s61, {WS_DBG + 512 * self.dbgwg + 256}\ns_cbranch_scc0 L_exit")
                for i in range(1, 16):
                    e(f"v_sub_u32 v{46 + i}, v{46 + i}, v46")
                e("v_sub_u32 v46, v75, v74")
                for i in range(4):
                    e(f"buffer_store_dwordx4 {vr(46 + 4 * i)}, off, {srd(SW1R)}, 0 offset:{16 * i}")
            e.raw("; STAMPS " + " ".join(self.stnames))
        if self.hold:
            e("s_mov_b32 s64, 0")
            e.label("L_hold")
            e("s_memrealtime s[62:63]\ns_add_u32 s64, s64, 1\ns_sub_u32 s62, s62, s96")
            e(f"s_cmp_gt_u32 s64, 100000\ns_cbranch_scc1 L_exit\ns_cmp_lt_u32 s62, {self.hold}\ns_cbranch_scc1 L_hold")
        e.label("L_exit")
        e("s_endpgm")

    def emit_stubs(self):
        e = self.e
        for name, body in self.stubs:
            e.label(name)
            e.forget()
            e("s_nop 7")
            body()
            e(f"s_add_u32 s{sSpin}, s{sSpin}, 1")
            e(f"s_cbranch_vccz {name}_back")
            e(f"s_cmp_lt_u32 s{sSpin}, {SPIN}\ns_cbranch_scc1 {name}\ns_branch {name}_back")

    def spare(self):
        e = self.e
        t = sT
        e.label("L_spare")
        e.forget()
        e(f"s_load_dword s{sN}, s[22:23], 0")
        if self.xt:
            e(f"s_add_u32 s{SX}, s4, s{t + 7}\ns_addc_u32 s{SX + 1}, s5, 0")
            if self.xt == 1:
                e(f"buffer_load_dword v254, v50, {srd(SX)}, 0 offen")
            else:
                self.xtouch()
        self.mk_srd(SWS, 22, 0x10000000)
        SWG, SGG = SWF, SWO
        self.mk_srd(SWG, 14, 41472)
        self.mk_srd(SGG, 10, 4608)
        e(f"s_mul_i32 s{t + 3}, s{sW}, 11264")
        for a, b in self.dma_w(SWG, 0):
            e(a + "\n" + b)
        e(f"""
        v_and_b32 v46, 7, v{vLane}
        v_lshrrev_b32 v47, 4, v{vLane}
        v_mul_u32_u24 v48, 288, v46
        v_lshl_add_u32 v48, v47, 3, v48
        s_mul_i32 s{t}, s{sB}, 2304
        """)
        for s in range(4):
            for h in range(2):
                e(f"buffer_load_dwordx2 {vr(60 + 4 * s + 2 * h, 2)}, v48, {srd(SGG)}, s{t} offen offset:{64 * s + 32 * h}")
        e(f"buffer_load_dwordx2 {vr(76, 2)}, v48, {srd(SGG)}, s{t} offen offset:256")
        e(f"""
        v_lshrrev_b32 v49, 2, v{vLane}
        v_mul_u32_u24 v49, 288, v49
        v_and_b32 v50, 3, v{vLane}
        v_lshl_add_u32 v49, v50, 3, v49
        s_lshl_b32 s{t + 1}, s{sW}, 5
        v_add_u32 v49, s{t + 1}, v49
        v_lshlrev_b32 v51, 4, v46
        v_lshl_add_u32 v51, v47, 7, v51
        s_mul_i32 s{t + 2}, s{sQ}, 4608
        s_add_u32 s{t + 2}, s{t + 2}, {WS_GE}
        s_lshl_b32 s{t + 1}, s{sW}, 9
        s_add_u32 s{t + 2}, s{t + 2}, s{t + 1}
        s_mov_b32 s{t + 5}, s{sW}
        s_mul_i32 s{sN}, s{sN}, 1664525
        s_add_u32 s{sN}, s{sN}, 1013904223
        v_mov_b32 v52, s{sN}
        """)
        e.wait(vm=0)
        e("s_barrier")
        e.label("L_sp1")
        e.forget()
        for s in range(5):
            for h in range(2 if s < 4 else 1):
                e(f"ds_read_b64_tr_b16 {vr(80 + 4 * s + 2 * h, 2)}, v49 offset:{(32 * s + 16 * h) * 288}")
        for s in range(4):
            e(f"v_mfma_f32_16x16x32_bf16 v[100:103], {vr(80 + 4 * s)}, {vr(60 + 4 * s)}, {'v[100:103]' if s else '0'}")
        e("v_mfma_f32_16x16x16_bf16 v[100:103], v[96:97], v[76:77], v[100:103]")
        for q in range(4):
            e(f"v_mul_f32 v{104 + q}, {f32(S2)}, v{100 + q}")
        e(f"buffer_store_dwordx4 v[104:107], v51, {srd(SWS)}, s{t + 2} offen sc1")
        e(f"""
        v_add_u32 v49, 128, v49
        s_add_u32 s{t + 2}, s{t + 2}, 2048
        s_add_u32 s{t + 5}, s{t + 5}, 4
        s_cmp_lt_u32 s{t + 5}, 9
        s_cbranch_scc1 L_sp1
        """)
        e.wait(vm=0)
        e("s_barrier")
        e(f"""
        s_cmp_eq_u32 s{sW}, 0
        s_cbranch_scc0 L_sp2
        s_add_u32 s{t}, s{sQ}, {252 + WS_FCL // 128}
        s_lshl_b32 s{t}, s{t}, 7
        s_mov_b64 exec, 1
        buffer_store_dword v52, off, {srd(SWS)}, s{t} sc1
        """)
        e.label("L_sp2")
        e("s_endpgm")

    def build(self):
        e = self.e
        e.raw(f"; @launch grid=(256,1,1) block=(256,1,1) lds={LDS_SIZE}")
        e.raw('.amdgcn_target "amdgcn-amd-amdhsa--gfx950"')
        e.raw(f".text\n.globl {KN}\n.p2align 8\n.type {KN},@function\n{KN}:")
        e(f"s_mov_b32 s{sSpin}, 0")
        self.prologue()
        self.setup()
        self.produce()
        self.conv1()
        self.transition()
        self.conv2()
        self.joint()
        self.epilogue()
        self.emit_stubs()
        self.spare()
        e.label("L_codeend")
        e.raw('.section .rodata,"a"\n.p2align 6')
        e.raw(f".amdhsa_kernel {KN}")
        e.raw("  .amdhsa_next_free_vgpr 512\n  .amdhsa_next_free_sgpr 102\n  .amdhsa_accum_offset 256\n"
              "  .amdhsa_group_segment_fixed_size 0\n  .amdhsa_kernarg_size 80\n  .amdhsa_user_sgpr_count 2\n"
              "  .amdhsa_user_sgpr_kernarg_segment_ptr 1\n  .amdhsa_system_sgpr_workgroup_id_x 1\n.end_amdhsa_kernel")
        return e.text()


if __name__ == "__main__":
    out = sys.argv[1]
    kw = eval("dict(" + (sys.argv[2] if len(sys.argv) > 2 else "") + ")")
    g = Gen(**kw)
    open(out, "w").write(g.build())
    print("written", out, "nops", g.e.nops, "lines", len(g.e.L))
```

```python
import math
import struct
import sys
from emit import Em, F, weave2, Ins, icost

KN = "standalone__seq2seq_rnn_t_joint__speech_kernel"


def f32(x):
    return "0x%08x" % struct.unpack("<I", struct.pack("<f", x))[0]


def vr(b, n=4):
    return f"v[{b}:{b + n - 1}]" if n > 1 else f"v{b}"


def ar(b, n=4):
    return f"a[{b}:{b + n - 1}]" if n > 1 else f"a{b}"


WS_FW2 = 0x2D0000
WS_FCL = 0x10000
WS_GE = 0x20000
WS_W1 = 0x30000
WS_W2 = 0x180000
WS_P = 0x300000
WS_DBG = 0x1000000
PSTR = 24576
BIG = 0x80000000
L_X = 0
L_WF = 0
L_WO = 45056
L_RED = 110592
REGW = 36864
L_XA, L_XB, L_XC = 12288, 24576, 147456
L_H = L_XC
L_FS = L_RED + 20480
LDS_SIZE = 159744
SPIN = 20000

SX, SW1R, SWS, SWF, SWO, SOUT, SW2R = 24, 28, 32, 36, 40, 44, 48
sQ, sJ, sG, sB, sGi, sW, sN = 54, 55, 56, 57, 58, 59, 60
sT = 61
sW1, sWo, sP, sPc = 70, 71, 72, 73
sMask = 74
sSpin = 80
sGeO = 81
sXm, sXl, sK1, sG2, sPw = 89, 90, 91, 92, 93
sXb, sXc = 88, 3
sPj, sPg = 79, 81
sC = 98
sIS = 100

(vT1o, vLane, vL16, vL16b, vChk, vXa0, vP94, vXa2, vRedW, vRedR, vPstB, vHr, vFree, vN9W, vN9R, vRedL, vPst, vPst9,
 vT1, vT2, vPl, vPl4, vPl9, vPl9b, vFw, vFw9, vFr, vFr9, vOut, vOut9, vGe, vFlA, vFlC, vCs) = range(34)
vAI, vA9, vSent = 34, 38, 42
RING, NSLOT = 46, 24
WBUF = 142
WCHK = 202
VWF = 206
W2R, W2T, vTw, vXb, vXo = 206, 210, 214, 218, 219
vT2a = 240
sReg = 22
ST = 232
vHw3, vH94, vXc, vClr, vTch = 220, 223, 227, 228, 229
A_W2, A_ACC, A_WF = 0, 144, 144

C1 = 2.0 * math.sqrt(2.0 / math.pi) * math.log2(math.e)
C2 = C1 * 0.044715
S2 = 2.0 * math.log2(math.e)


def srd(i):
    return f"s[{i}:{i + 3}]"


class Gen:
    def __init__(self, stamps=0, plpos=40, outflags="nt", dbgwg=None, hold=0, rot=3, n1=6, gate=1,
                 pre="c0 c1 | c2 B12", cpos=150, lb=60, barc=262, w2pos=(41, 100, 200, 240), both=1, gray=1, tch=0, pb=70, fpos=150,
                 clr=0, log=0, nlate=0, trd=6, trq='cfo', wfl=0, gestep=4, bdl=70, xfl='', gfl='', rotb=0, bfl=None, xt=0, pmap=1, nb=1, w2p=((93, 4), (133, 8), (188, 6), (243, 18)), w2dl=12, bars=((255, 2), (318, 1)), cbar=0, rend=350, bend=250, bstep=4, w1dl=12, trl=(8, 10), spos=0, tm=0, stch=0):
        self.e = Em()
        for k, v in list(locals().items()):
            if k != "self":
                setattr(self, k, v)
        self.stubs = []
        self.nst = 0
        self.stnames = []

    SLOTS = [82, 84, 86, 0, 52] + list(range(4, 20, 2))
    SETS = {1: "karg xland c0ok c2ok c4ok W2 c1end B2 B3 c2end pok issued drained",
            2: "karg c0ok c1ok c2ok c3ok c4ok preW2 W2 c5ok c6ok c1end B2 drained",
            3: "karg x1 setup prod x2 x3 xland B1 c0ok c1ok B2 drained",
            4: "karg c1end B2 gelu B3 preB4 B4 preF F c2end B5 pok drained",
            5: "karg c2end B5 prePL PL cs pok fb issued drained"}

    def stamp(self, name="", lvl=1):
        if self.stamps and name in self.SETS.get(self.stamps, self.stamps).split():
            i = self.SLOTS[self.nst]
            self.nst += 1
            self.stnames.append(name)
            keep = list(self.e.smem)
            self.e(f"s_memtime s[{i}:{i + 1}]")
            self.e.smem = keep

    def posstamps(self, pre, fill):
        if self.stamps:
            for nm in self.SETS.get(self.stamps, self.stamps).split():
                if nm[0] == pre and nm[1:].isdigit():
                    fill.append([F((lambda nm=nm: self.stamp(nm)), int(nm[1:]), int(nm[1:]) + 1)])

    def mk_srd(self, d, base, size):
        self.e(f"s_mov_b32 s{d}, s{base}\ns_mov_b32 s{d + 1}, s{base + 1}\ns_mov_b32 s{d + 2}, {size}\ns_mov_b32 s{d + 3}, 0x20000")

    def gelu_pairs(self, pairs, tmp, scaled=False):
        e = self.e
        for x, t in zip(pairs, tmp):
            e(f"v_pk_mul_f32 {vr(t, 2)}, {vr(x, 2)}, {vr(x, 2)}")
        for x, t in zip(pairs, tmp):
            e(f"v_pk_fma_f32 {vr(t, 2)}, {vr(t, 2)}, s[{sC}:{sC + 1}], s[{sC}:{sC + 1}] op_sel:[0,0,1] op_sel_hi:[1,0,1]")
        for x, t in zip(pairs, tmp):
            e(f"v_pk_mul_f32 {vr(t, 2)}, {vr(t, 2)}, {vr(x, 2)}")
        for x, t in zip(pairs, tmp):
            e(f"v_exp_f32 v{t}, v{t}\nv_exp_f32 v{t + 1}, v{t + 1}")
        for x, t in zip(pairs, tmp):
            if scaled:
                e(f"v_pk_fma_f32 {vr(t, 2)}, {vr(t, 2)}, s[{sIS}:{sIS + 1}], s[{sIS}:{sIS + 1}]")
            else:
                e(f"v_pk_add_f32 {vr(t, 2)}, {vr(t, 2)}, 1.0 op_sel_hi:[1,0]")
        for x, t in zip(pairs, tmp):
            e(f"v_rcp_f32 v{t}, v{t}\nv_rcp_f32 v{t + 1}, v{t + 1}")
        for x, t in zip(pairs, tmp):
            e(f"v_pk_mul_f32 {vr(x, 2)}, {vr(x, 2)}, {vr(t, 2)}")

    def prologue(self):
        e = self.e
        e("s_cmp_ge_u32 s2, 256\ns_cbranch_scc1 L_exit")
        e("s_load_dwordx16 s[4:19], s[0:1], 0\ns_load_dwordx4 s[20:23], s[0:1], 64")
        if self.stamps or self.hold:
            e("s_memrealtime s[96:97]")
        e("s_getpc_b64 s[52:53]")
        e.label("L_pc")
        e("v_lshlrev_b32 v1, 7, v0")
        e("v_min_u32 v1, L_codeend-L_pc-4, v1")
        e("global_load_dword v255, v1, s[52:53]")
        e(f"v_lshrrev_b32 v2, 6, v0\nv_and_b32 v{vLane}, 63, v0")
        e(f"v_readfirstlane_b32 s{sW}, v2")
        t = sT
        e(f"""
        s_and_b32 s{t}, s2, 1
        s_lshl_b32 s{t}, s{t}, 5
        s_lshr_b32 s{t + 1}, s2, 3
        s_add_u32 s{t}, s{t}, s{t + 1}
        s_bfe_u32 s{sQ}, s2, 0x20001
        s_bfe_u32 s{t + 1}, s2, {0x10002 if self.gray else 0}
        s_xor_b32 s{sQ}, s{sQ}, s{t + 1}
        s_mul_i32 s{sJ}, s{t}, 37
        s_lshr_b32 s{sJ}, s{sJ}, 8
        s_mul_i32 s{t + 1}, s{sJ}, 7
        s_sub_u32 s{t + 2}, s{t}, s{t + 1}
        s_mul_i32 s{sG}, s{sQ}, 7
        s_add_u32 s{sG}, s{sG}, s{t + 2}
        s_lshr_b32 s{sB}, s{sQ}, 1
        s_mul_i32 s{t + 1}, s{sB}, 14
        s_sub_u32 s{sGi}, s{sG}, s{t + 1}
        s_mul_i32 s{t + 7}, s{sB}, 1152000
        """)
        if self.pmap:
            e(f"""
            s_mul_i32 s{t + 1}, s{t}, 57
            s_lshr_b32 s{t + 1}, s{t + 1}, 9
            s_mul_i32 s{t + 2}, s{t + 1}, 9
            s_sub_u32 s{sPj}, s{t}, s{t + 2}
            s_mul_i32 s{sPg}, s{sQ}, 7
            s_add_u32 s{sPg}, s{sPg}, s{t + 1}
            """)
        else:
            e(f"s_mov_b32 s{sPj}, s{sJ}\ns_mov_b32 s{sPg}, s{sG}")
        e(f"v_lshlrev_b32 v{vL16}, 4, v{vLane}")
        e(f"v_lshrrev_b32 v46, 1, v{vLane}\nv_and_b32 v47, 1, v{vLane}\nv_lshlrev_b32 v47, 4, v47")
        e("v_mul_u32_u24 v48, 288, v46\nv_add_u32 v48, v48, v47")
        e(f"""
        v_lshrrev_b32 v46, 2, v{vLane}
        v_mul_u32_u24 v46, 576, v46
        v_and_b32 v47, 3, v{vLane}
        v_lshl_add_u32 v{vXc}, v47, 4, v46
        s_mul_i32 s{t}, s{sW}, {REGW}
        s_add_u32 s{t}, s{t}, {L_XA}
        s_add_u32 s{sXl}, s{t}, {11 * 1024}
        s_and_b32 s{t + 1}, s{sJ}, 3
        s_mul_i32 s{t + 1}, s{t + 1}, {1024 * self.rot}
        s_add_u32 s{sXm}, s{t}, s{t + 1}
        s_mul_i32 s{t + 1}, s{t + 1}, 9
        s_mul_i32 s{t}, s{sGi}, 82944
        s_sub_u32 s{t}, s{t}, 12928
        v_add_u32 v{vXc}, s{t}, v{vXc}
        s_lshl_b32 s{t}, s{sW}, 6
        s_add_u32 s{t}, s{t}, s{t + 1}
        v_add_u32 v{vXo}, s{t}, v{vXc}
        s_movk_i32 s{sK1}, 1024
        """)
        if self.xt == 1:
            e(f"""
            s_lshr_b32 s{t}, s2, 3
            s_lshl_b32 s{t}, s{t}, 2
            s_add_u32 s{t}, s{t}, s{sW}
            s_mul_i32 s{t}, s{t}, 4864
            s_and_b32 s{t + 1}, s{sQ}, 1
            s_mul_i32 s{t + 1}, s{t + 1}, {7 * 82944}
            s_add_u32 s{t}, s{t}, s{t + 1}
            s_sub_u32 s{t}, s{t}, 13056
            v_lshl_add_u32 v50, v{vLane}, 7, s{t}
            v_cmp_gt_u32 vcc, 38, v{vLane}
            v_cndmask_b32 v50, -16, v50, vcc
            """)
        e(f"""
        s_and_b32 s{t + 5}, s{sPg}, 3
        s_lshl_b32 s{t + 3}, s{t + 5}, 5
        s_add_u32 s{t + 4}, s{t + 3}, {144 - 288 * 16}
        s_add_u32 s{t + 3}, s{t + 3}, 16
        s_mul_i32 s{t + 5}, s{t + 5}, 1152
        s_add_u32 s{t + 5}, s{t + 5}, {-16 - 288 * 31}
        s_lshr_b32 s{t + 2}, s{sPg}, 2
        s_mul_i32 s{t + 2}, s{t + 2}, 5
        s_lshl_b32 s{t + 6}, s{sPj}, 5
        s_mul_i32 s{sPj}, s{sPj}, 28
        s_add_u32 s{sPj}, s{sPj}, s{sPg}
        """)
        ioff = [0, 0, 2048, 3072, 3072]
        for i in range(5):
            e(f"""
            s_cmp_lt_u32 s{t + 2}, {31 - i}
            s_cselect_b32 s{t}, s{t + 4}, s{t + 5}
            s_cmp_lt_u32 s{t + 2}, {16 - i}
            s_cselect_b32 s{t}, s{t + 3}, s{t}
            """)
            if i == 0:
                e(f"s_mul_i32 s{t + 1}, s{t + 2}, 288")
            e(f"""
            s_add_u32 s{t}, s{t}, s{t + 1}
            s_mul_i32 s{t}, s{t}, 288
            s_add_u32 s{t}, s{t}, s{t + 6}
            s_add_u32 s{sMask + i}, s{t}, {82944 * i - ioff[i]}
            """)
        e(f"v_add_u32 v49, s{sMask + 1}, v48")
        e("s_mov_b32 m0, 0")
        e(f"s_mov_b32 s{SW1R + 2}, 1285632\ns_mov_b32 s{SW1R + 3}, 0x20000\ns_mov_b32 s{SX + 2}, 1152000\ns_mov_b32 s{SX + 3}, 0x20000")
        e.wait(lg=0)
        self.stamp("karg")
        if self.stamps:
            e("s_memrealtime s[94:95]")
            e.smem = []
        e(f"s_mov_b32 s{SW1R}, s6\ns_mov_b32 s{SW1R + 1}, s7")
        e(f"s_cmp_eq_u32 s{sJ}, 9\ns_cbranch_scc1 L_spare")
        e(f"s_cmp_eq_u32 s{sW}, 0\ns_cbranch_scc0 L_g1")
        for i in (0, 2, 3, 1, 4):
            if i == 1:
                e("s_mov_b32 m0, 1024")
                e(f"buffer_load_dwordx4 v49, {srd(SW1R)}, 0 offen {self.gfl} lds")
            else:
                e(f"buffer_load_dwordx4 v48, {srd(SW1R)}, s{sMask + i} offen offset:{ioff[i]} {self.gfl} lds")
        e.label("L_g1")
        e.forget()
        e(f"s_add_u32 s{SX}, s4, s{t + 7}\ns_addc_u32 s{SX + 1}, s5, 0")
        if self.xt == 1:
            e(f"buffer_load_dword v254, v50, {srd(SX)}, 0 offen")
        self.tokA = self.x_loop("L_x1", self.n1)
        self.stamp("x1", 3)
        e(f"s_load_dword s{sN}, s[22:23], 0")
        e(f"s_mul_i32 s21, s{sPj}, 5376\ns_add_u32 s21, s21, {WS_W1}")
        if self.tm or "T" in self.pre.split():
            e(f"s_lshl_b32 s{t}, s{sPj}, 2\ns_add_u32 s{t}, s{t}, s{sW}\ns_mul_i32 s{t}, s{t}, 10\nv_min_u32 v{vT2a}, 9, v{vLane}\nv_add_lshl_u32 v{vT2a}, v{vT2a}, s{t}, 7")
        self.mk_srd(SWS, 22, 0x10000000)
        self.mk_srd(SW2R, 8, 1285632)
        if self.tm == 1:
            e(f"buffer_load_dword v{vT2a + 1}, v{vT2a}, {srd(SW2R)}, 0 offen")
        if self.xt == 2:
            self.xtouch()

    def xtouch(self):
        t = sT
        self.e(f"""
        s_lshr_b32 s{t}, s2, 3
        s_lshl_b32 s{t}, s{t}, 2
        s_add_u32 s{t}, s{t}, s{sW}
        s_mul_i32 s{t}, s{t}, 17
        v_add_u32 v253, s{t}, v{vLane}
        v_lshlrev_b32 v252, 2, v253
        v_lshrrev_b32 v253, 2, v253
        s_mov_b32 s{t}, 0x84308430
        v_bfe_u32 v252, s{t}, v252, 4
        v_mad_u32_u24 v253, v253, 9, v252
        s_and_b32 s{t + 1}, s{sQ}, 1
        s_mul_i32 s{t + 1}, s{t + 1}, {7 * 82944}
        s_sub_u32 s{t}, s{t + 1}, 13056
        v_lshl_add_u32 v253, v253, 7, s{t}
        v_cmp_gt_u32 vcc, 17, v{vLane}
        v_cndmask_b32 v253, -16, v253, vcc
        buffer_load_dword v254, v253, {srd(SX)}, 0 offen
        """)

    def x_loop(self, name, n):
        e = self.e
        t = sT
        if n == 0:
            return
        e(f"s_mov_b32 m0, s{sXm}\ns_movk_i32 s{t + 1}, {n}")
        e.label(name)
        e(f"""
        buffer_load_dwordx4 v{vXo}, {srd(SX)}, 0 offen {self.xfl} lds
        s_cmp_eq_u32 m0, s{sXl}
        s_cselect_b32 s{t}, {(-11 * 1024) & 0xffffffff}, s{sK1}
        s_add_u32 m0, m0, s{t}
        s_mul_i32 s{t}, s{t}, 9
        v_add_u32 v{vXo}, s{t}, v{vXo}
        s_sub_u32 s{t + 1}, s{t + 1}, 1
        s_cmp_lg_u32 s{t + 1}, 0
        s_cbranch_scc1 {name}
        s_mov_b32 s{sXm}, m0
        """)
        tok = e.vm[-1][0]
        for _ in range(n - 1):
            e.vm.insert(len(e.vm) - 1, (-1, []))
        return tok

    def setup(self):
        e = self.e
        t = sT
        m, g, a, b, c = 46, 47, 48, 49, 50
        self.mk_srd(SWF, 12, 41472)
        self.mk_srd(SWO, 16, 41472)
        self.mk_srd(SOUT, 18, 4608000)
        e(f"""
        v_and_b32 v{m}, 15, v{vLane}
        v_lshrrev_b32 v{g}, 4, v{vLane}
        v_mul_u32_u24 v{a}, 704, v{m}
        v_lshl_add_u32 v{a}, v{g}, 4, v{a}
        s_mul_i32 s{sReg}, s{sW}, {REGW}
        v_add_u32 v{vXa0}, s{sReg}, v{a}
        s_add_u32 s{sXb}, s{sReg}, {L_XB}
        s_lshl_b32 s{t}, s{sW}, 8
        s_add_u32 s{t}, s{t}, {L_XC}
        v_add_u32 v{vXa2}, s{t}, v{a}
        s_lshl_b32 s{t}, s{sW}, 6
        s_add_u32 s{t}, s{t}, 256
        v_add_u32 v{vXb}, s{t}, v{vXc}
        s_mul_i32 s{t}, s{sW}, 3072
        s_add_u32 s{sXc}, s{t}, {L_XC}
        s_mul_i32 s{t}, s{t}, 9
        s_sub_u32 s{t}, s{t}, 64
        v_add_u32 v{vXc}, s{t}, v{vXc}
        v_add_u32 v{vRedL}, {L_RED}, v{vL16}
        v_add_u32 v{vRedW}, s{sReg}, v{vL16}
        s_mul_i32 s{t + 1}, s{sW}, 3
        s_min_u32 s{t + 1}, s{t + 1}, 8
        s_lshl_b32 s{t}, s{t + 1}, 10
        v_add_u32 v{vRedR}, s{t}, v{vL16}
        v_add_u32 v{vFree}, {2 * REGW}, v{vRedR}
        s_mul_i32 s{t}, s{sW}, 5120
        v_add_u32 v{vN9W}, s{t}, v{vRedL}
        s_lshl_b32 s{t}, s{sW}, 10
        v_add_u32 v{vN9R}, s{t}, v{vRedL}
        v_mul_u32_u24 v{a}, 11, v{m}
        v_add_u32 v{a}, s{t + 1}, v{a}
        s_mul_i32 s{t}, s{sGi}, 144
        s_sub_u32 s{t}, s{t}, 15
        s_movk_i32 s{t + 2}, 2000
        v_lshrrev_b32 v{c}, 1, v{g}
        v_lshl_add_u32 v{c}, v{g}, 1, v{c}
        v_and_b32 v{c}, 3, v{c}
        v_lshlrev_b32 v{c}, 3, v{c}
        v_add_u32 v{c}, {L_H}, v{c}
        """)
        for k in range(3):
            e(f"""
            v_mul_u32_u24 v{b}, 205, v{a}
            v_lshrrev_b32 v{b}, 11, v{b}
            v_add_u32 v{b}, v{b}, v{a}
            v_lshl_add_u32 v{vHw3 + k}, v{b}, 5, v{c}
            v_add_u32 v{b}, s{t}, v{a}
            v_cmp_gt_u32_e64 s[{sMask + 2 * k}:{sMask + 2 * k + 1}], s{t + 2}, v{b}
            """)
            if k < 2:
                e(f"v_add_u32 v{a}, 1, v{a}")
        e(f"""
        v_mul_u32_u24 v{a}, 352, v{m}
        v_lshl_add_u32 v{a}, v{g}, 4, v{a}
        v_add_u32 v{vHr}, {L_H}, v{a}
        s_mul_i32 s{t}, s{sW}, 288
        v_add_u32 v{vH94 + 3}, s{t}, v{vHr}
        """)
        for k in range(3):
            e(f"s_cmp_gt_u32 s{sW}, {k}\ns_cselect_b32 s{t}, 32, 0\nv_subrev_u32 v{vH94 + k}, s{t}, v{vH94 + 3}")
        e(f"""
        v_lshlrev_b32 v{a}, 6, v{m}
        v_lshl_add_u32 v{vPst}, v{g}, 4, v{a}
        v_lshrrev_b32 v{vPst9}, 1, v{vPst}
        v_add_u32 v{vPst9}, 20480, v{vPst9}
        v_lshrrev_b32 v{a}, 2, v{vLane}
        v_mul_u32_u24 v{a}, 288, v{a}
        v_and_b32 v{b}, 3, v{vLane}
        v_lshl_add_u32 v{vT1}, v{b}, 3, v{a}
        v_add_u32 v{vT1o}, {L_WO}, v{vT1}
        v_lshl_add_u32 v{vT2}, v{b}, 3, v{vT1o}
        """)
        e(f"""
        s_mul_i32 s{t}, s{sJ}, 28
        s_add_u32 s{t}, s{t}, s{sW}
        s_mul_i32 s{sW1}, s{t}, 5376
        s_add_u32 s{sW1}, s{sW1}, {WS_W1}
        s_mul_i32 s{sPc}, s{sG}, {9 * PSTR}
        s_add_u32 s{sPc}, s{sPc}, {WS_P}
        s_mul_i32 s{sP}, s{sJ}, {PSTR}
        s_add_u32 s{sP}, s{sP}, s{sPc}
        s_mul_i32 s{sGeO}, s{sQ}, 4608
        s_add_u32 s{sGeO}, s{sGeO}, {WS_GE}
        s_mov_b32 s{sC}, {f32(-C2)}
        s_mov_b32 s{sC + 1}, {f32(-C1)}
        s_mov_b32 s{sIS}, {f32(1.0 / S2)}
        s_mov_b32 s{sIS + 1}, {f32(1.0 / S2)}
        """)
        self.presetup()

    def setup2(self):
        L = []
        e = lambda text: L.append([l.strip() for l in text.split("\n") if l.strip()])
        t = sT
        m, g, a, b, c, big, v52, v53 = range(ST, ST + 8)
        e(f"v_and_b32 v{m}, 15, v{vLane}\nv_lshrrev_b32 v{g}, 4, v{vLane}\nv_mov_b32 v{big}, {BIG}")
        e(f"""
        s_mul_i32 s{t}, s{sJ}, 4608
        s_mul_i32 s{t + 1}, s{sW}, {4 * 82944}
        s_add_u32 s{t}, s{t}, s{t + 1}
        v_add_u32 v{W2R}, s{t}, v{vL16}
        v_lshrrev_b32 v{a}, 5, v{vLane}
        v_mul_u32_u24 v{a}, 36864, v{a}
        v_add3_u32 v{W2R + 1}, v{a}, v{vL16b}, s{t}
        v_add_u32 v{W2R + 2}, {36864 + 5120}, v{W2R}
        v_lshrrev_b32 v{a}, 3, v{a}
        v_bfe_u32 v{b}, v{vLane}, 2, 3
        v_mul_u32_u24 v{b}, 288, v{b}
        v_and_b32 v{c}, 3, v{vLane}
        v_lshlrev_b32 v{c}, 3, v{c}
        v_add3_u32 v{a}, v{a}, v{b}, v{c}
        s_lshl_b32 s{t}, s{sW}, 6
        v_add_u32 v{W2T}, s{t}, v{a}
        v_add_u32 v{W2T + 1}, 49152, v{W2T}
        v_add_u32 v{W2T + 2}, 98304, v{W2T}
        v_add_u32 v{W2T + 3}, s{sReg}, v{a}
        """)
        e("\n".join(f"v_mov_b32 v{vSent + q}, -1" for q in range(4)))
        e(f"""
        s_mul_i32 s{sPw}, s{sW}, 5120
        s_add_u32 s{sPw}, s{sPw}, s{sP}
        s_mul_i32 s{t}, s{sW}, 640
        s_add_u32 s{t}, s{t}, 20480
        v_add_u32 v{a}, s{t}, v{vL16}
        v_cmp_gt_u32 vcc, 40, v{vLane}
        v_cndmask_b32 v{vClr}, v{big}, v{a}, vcc
        s_cmp_eq_u32 s{sW}, 0
        s_cselect_b32 s{t}, 0, {BIG}
        v_or_b32 v{vP94}, s{t}, v{vPst9}
        v_add_u32 v{a}, 2048, v{vPst}
        v_cmp_gt_u32 vcc, 14, v{m}
        v_cndmask_b32 v{vPstB}, v{big}, v{a}, vcc
        v_cmp_gt_u32 vcc, 15, v{m}
        v_cndmask_b32 v{vPst}, v{big}, v{vPst}, vcc
        """)
        e(f"""
        s_lshl_b32 s{t}, s{sJ}, 2
        s_add_u32 s{t + 8}, s{t}, s{sW}
        s_mul_i32 s{t}, s{t + 8}, 37
        s_lshr_b32 s{t}, s{t}, 8
        s_mul_i32 s{t + 1}, s{t}, 7
        s_sub_u32 s{t + 1}, s{t + 8}, s{t + 1}
        s_lshl_b32 s{t + 1}, s{t + 1}, 1
        s_cmp_eq_u32 s{t + 8}, 35
        s_cselect_b32 s{t}, 0, s{t}
        s_cselect_b32 s{t + 1}, 14, s{t + 1}
        s_cselect_b32 s{t + 2}, 512, 32
        s_cselect_b32 s{t + 3}, 1, 5
        s_lshl_b32 s{t + 4}, s{t}, 9
        s_lshl_b32 s{t + 5}, s{t + 1}, 5
        s_add_u32 s{t + 4}, s{t + 4}, s{t + 5}
        s_mul_i32 s{t + 5}, s{t + 1}, 5
        s_add_u32 s{t + 5}, s{t + 5}, s{t}
        s_mul_i32 s{t + 6}, s{sGi}, 72
        s_add_u32 s{t + 5}, s{t + 5}, s{t + 6}
        s_lshl_b32 s{t + 6}, s{t + 2}, 1
        s_lshl_b32 s{t + 7}, s{t + 4}, 1
        """)
        e(f"""
        v_lshrrev_b32 v{a}, 5, v{vLane}
        v_mul_u32_u24 v{a}, {PSTR}, v{a}
        v_bfe_u32 v{b}, v{vLane}, 3, 2
        v_mul_u32_u24 v{b}, 5120, v{b}
        v_add3_u32 v{a}, v{a}, v{b}, s{t + 7}
        v_bfe_u32 v{b}, v{vLane}, 2, 1
        v_mad_u32_u24 v{a}, v{b}, s{t + 6}, v{a}
        v_and_b32 v{c}, 3, v{vLane}
        v_lshl_add_u32 v{vPl}, v{c}, 4, v{a}
        v_cmp_gt_u32 vcc, 32, v{vLane}
        v_cndmask_b32 v{vPl4}, v{big}, v{vPl}, vcc
        v_mul_u32_u24 v{b}, 288, v{b}
        v_lshl_add_u32 v{b}, v{c}, 4, v{b}
        v_lshrrev_b32 v{a}, 5, v{vLane}
        v_lshl_add_u32 v{b}, v{a}, 7, v{b}
        v_bfe_u32 v{a}, v{vLane}, 4, 1
        v_lshl_add_u32 v{b}, v{a}, 3, v{b}
        v_bfe_u32 v{v52}, v{vLane}, 3, 1
        v_lshl_add_u32 v{b}, v{v52}, 6, v{b}
        s_mul_i32 s{t}, s{sW}, 640
        s_add_u32 s{t}, s{t}, {L_FS}
        v_add_u32 v{vFw}, s{t}, v{b}
        v_and_b32 v{v53}, 7, v{vLane}
        v_mul_u32_u24 v{a}, {PSTR}, v{g}
        v_mad_u32_u24 v{a}, v{v52}, s{t + 2}, v{a}
        v_lshl_add_u32 v{a}, v{v53}, 2, v{a}
        s_add_u32 s{t + 4}, s{t + 4}, 20480
        v_add_u32 v{vPl9}, s{t + 4}, v{a}
        v_cmp_gt_u32_e64 s[{t + 7}:{t + 8}], 16, v{vLane}
        v_mul_u32_u24 v{a}, 288, v{v52}
        v_add_u32 v{a}, s{t}, v{a}
        v_cndmask_b32_e64 v{vPl9b}, v{big}, v{vPl9}, s[{t + 7}:{t + 8}]
        v_lshl_add_u32 v{vFr}, v{g}, 4, v{a}
        v_add_u32 v{a}, 256, v{a}
        v_lshl_add_u32 v{vFr9}, v{g}, 3, v{a}
        v_lshl_add_u32 v{a}, v{v53}, 2, v{a}
        v_lshl_add_u32 v{a}, v{g}, 1, v{a}
        s_add_u32 s{t}, s{t}, 512
        v_lshl_add_u32 v{b}, v{vLane}, 1, s{t}
        v_cndmask_b32 v{vFw9}, v{b}, v{a}, vcc
        v_lshlrev_b32 v{a}, 4, v{v53}
        v_lshl_add_u32 v{vGe}, v{g}, 7, v{a}
        v_mov_b32 v{a}, s{t + 5}
        v_mad_u32_u24 v{a}, v{v52}, s{t + 3}, v{a}
        v_cmp_gt_u32 vcc, 1000, v{a}
        s_mul_i32 s{t}, s{sB}, 1000
        v_add_u32 v{a}, s{t}, v{a}
        v_lshl_add_u32 v{a}, v{a}, 3, v{v53}
        v_mul_u32_u24 v{a}, 288, v{a}
        v_cndmask_b32 v{a}, v{big}, v{a}, vcc
        v_lshl_add_u32 v{vOut}, v{g}, 4, v{a}
        v_add_u32 v{a}, 256, v{a}
        v_lshl_add_u32 v{vOut9}, v{g}, 3, v{a}
        """)
        e(f"""
        s_mul_i32 s{t}, s{sG}, 9
        v_add_u32 v{a}, s{t}, v{vLane}
        v_add_u32 v{b}, 243, v{vLane}
        v_min_u32 v{b}, 255, v{b}
        v_cmp_gt_u32 vcc, 9, v{vLane}
        s_movk_i32 s{t}, {WS_FCL // 128}
        v_cndmask_b32 v{a}, v{b}, v{a}, vcc
        v_add_lshl_u32 v{vFlC}, v{a}, s{t}, 7
        """)
        e(f"""
        v_and_b32 v{a}, 1, v{g}
        v_lshlrev_b32 v{a}, 3, v{a}
        v_sub_u32 v{a}, v{m}, v{a}
        v_and_b32 v{b}, 1, v{a}
        v_lshlrev_b32 v{b}, 4, v{b}
        v_mov_b32 v{c}, 0x3f80
        v_lshlrev_b32 v{b}, v{b}, v{c}
        v_lshrrev_b32 v{a}, 1, v{a}
        """)
        for q in range(4):
            e(f"v_cmp_eq_u32 vcc, {q}, v{a}\nv_cndmask_b32 v{vAI + q}, 0, v{b}, vcc")
        e(f"""
        v_cmp_eq_u32 vcc, 0, v{m}
        v_lshlrev_b32 v{b}, 16, v{c}
        v_cndmask_b32 v{vA9}, 0, v{c}, vcc
        v_cmp_eq_u32 vcc, 4, v{m}
        v_cndmask_b32 v{vA9}, v{vA9}, v{b}, vcc
        v_mov_b32 v{vA9 + 1}, v{vA9}
        v_mov_b32 v{vA9 + 2}, v{vA9}
        v_mov_b32 v{vA9 + 3}, v{vA9}
        """)
        if self.tch:
            e(f"""
            s_lshr_b32 s{t}, s2, 3
            s_lshl_b32 s{t}, s{t}, 2
            s_add_u32 s{t}, s{t}, s{sW}
            s_mul_i32 s{t}, s{t}, 3
            v_min_u32 v{a}, 2, v{vLane}
            v_add_lshl_u32 v{vTch}, v{a}, s{t}, 7
            """)
        return L

    def presetup(self):
        e = self.e
        m, g, a = 46, 47, 48
        e(f"""
        v_add_u32 v{vL16b}, 4096, v{vL16}
        v_lshlrev_b32 v{vChk}, 2, v{vLane}
        v_add_u32 v{vChk}, 5120, v{vChk}
        """)
        e(f"v_lshlrev_b32 v{a}, 8, v{g}\nv_lshl_add_u32 v{a}, v{m}, 3, v{a}\nv_mov_b32 v54, v{a}")
        e(f"s_mul_i32 s{sN}, s{sN}, 1664525\ns_add_u32 s{sN}, s{sN}, 1013904223")

    def checksum(self, base):
        L = []
        for i in range(10):
            prev = f"s{sN}" if i == 0 else f"v{vCs}"
            L.append(f"v_add3_u32 v{vCs}, v{base + 2 * i}, v{base + 2 * i + 1}, {prev}")
        return L

    def produce(self):
        e = self.e
        t = sT
        R = 56
        if self.xt == 3:
            self.xtouch()
        self.stamp("setup", 3)
        if self.nb:
            e("s_barrier")
        e(f"s_cmp_eq_u32 s{sW}, 0\ns_cbranch_scc0 L_p1")
        snap = e.snapshot()
        t = 21
        e.wait(vm=len(e.vm))
        for i in range(5):
            for h in range(2):
                e(f"ds_read_b64_tr_b16 {vr(R + 4 * i + 2 * h, 2)}, v54 offset:{1024 * i + 128 * h}")
        cs = self.checksum(R)
        for i in range(5):
            a, o = (vL16, 1024 * i) if i < 4 else (vL16b, 0)
            e(f"buffer_store_dwordx4 {vr(R + 4 * i)}, v{a}, {srd(SWS)}, s{t} offen offset:{o} sc1")
            e(cs[2 * i])
            e(cs[2 * i + 1])
        e(f"buffer_store_dword v{vCs}, v{vChk}, {srd(SWS)}, s{t} offen sc1")
        e.label("L_p1")
        e.restore(snap)
        e.hist = []
        if self.gate:
            e("s_barrier")
        self.stamp("prod", 3)

    def w1_loads(self, c, soff):
        b = WBUF + 20 * (c % 3)
        L = []
        for i in range(5):
            a, o = (vL16, 1024 * i) if i < 4 else (vL16b, 0)
            L.append(f"buffer_load_dwordx4 {vr(b + 4 * i)}, v{a}, {srd(SWS)}, s{soff} offen offset:{o} sc1")
        L.append(f"buffer_load_dword v{WCHK + c % 3}, v{vChk}, {srd(SWS)}, s{soff} offen sc1")
        return L

    def add_stub(self, name, body):
        self.stubs.append((name, body))

    def w1_check(self, c):
        e = self.e
        e(f"v_cmp_ne_u32 vcc, v{vCs}, v{WCHK + c % 3}")
        e(f"s_cbranch_vccnz L_r1_{c}")
        e.label(f"L_r1_{c}_back")

        def body():
            for cc in range(c, min(c + 1 + self.both, 7)):
                e(f"s_add_u32 s20, s{sW1}, {21504 * cc}")
                for l in self.w1_loads(cc, 20):
                    e(l)
            e.wait(vm=0)
            for l in self.checksum(WBUF + 20 * (c % 3)):
                e(l)
            e(f"v_cmp_ne_u32 vcc, v{vCs}, v{WCHK + c % 3}")
        self.add_stub(f"L_r1_{c}", body)

    def flag_check(self, name, vaddr, vdata):
        e = self.e
        e(f"v_cmp_ne_u32 vcc, s{sN}, v{vdata}")
        e(f"s_cbranch_vccnz {name}")
        e.label(f"{name}_back")

        def body():
            e(f"buffer_load_dword v{vdata}, v{vaddr}, {srd(SWS)}, 0 offen sc1")
            e.wait(vm=0)
            e(f"v_cmp_ne_u32 vcc, s{sN}, v{vdata}")
        self.add_stub(name, body)

    def xb_item(self, k):
        fl = self.xfl if self.bfl is None else self.bfl
        if k < 12:
            if self.rotb:
                if k == 0:
                    pre = f"s_mov_b32 m0, s{sXb}"
                elif k % 3:
                    pre = f"s_add_u32 m0, s{sXb}, {1024 * (k % 3)}\nv_add_u32 v{vXb}, 9216, v{vXb}"
                else:
                    pre = (f"s_cmp_eq_u32 s{sXb}, s{sXl}\ns_cselect_b32 s{sXm}, s{sK1}, 3072\ns_add_u32 s{sXb}, s{sXb}, s{sXm}\n"
                           f"s_mov_b32 m0, s{sXb}\ns_mul_i32 s{sXm}, s{sXm}, 9\ns_sub_u32 s{sXm}, s{sXm}, 18432\nv_add_u32 v{vXb}, s{sXm}, v{vXb}")
            else:
                pre = f"s_add_u32 m0, s{sXb}, {1024 * k}" + (f"\nv_add_u32 v{vXb}, 9216, v{vXb}" if k else "")
            return pre, f"buffer_load_dwordx4 v{vXb}, {srd(SX)}, 0 offen {fl} lds"
        pre = f"s_add_u32 m0, s{sXc}, {1024 * (k - 12)}" + (f"\nv_add_u32 v{vXc}, 9216, v{vXc}" if k > 12 else "")
        return pre, f"buffer_load_dwordx4 v{vXc}, {srd(SX)}, 0 offen {fl} lds"

    def clears(self):
        t = sT
        L = [f"buffer_store_dwordx4 {vr(vSent)}, v{vPst if c < 2 else vPstB}, {srd(SWS)}, s{sPw} offen offset:{1024 * c - (2048 if c >= 2 else 0)} sc1" for c in range(5)]
        return L + [f"buffer_store_dwordx4 {vr(vSent)}, v{vClr}, {srd(SWS)}, s{sP} offen sc1"]

    def conv1(self):
        e = self.e
        t = sT
        K = self.tok = {}
        K["A"] = self.x_loop("L_x2", 12 - self.n1) or self.tokA
        self.stamp("x2", 3)
        if self.rotb:
            e(f"""
            s_add_u32 s{sXl}, s{sXb}, 9216
            s_movk_i32 s{sK1}, {-9216}
            s_and_b32 s{t}, s{sJ}, 3
            s_mul_i32 s{t}, s{t}, 3072
            s_add_u32 s{sXb}, s{sXb}, s{t}
            s_mul_i32 s{t}, s{t}, 9
            v_add_u32 v{vXb}, s{t}, v{vXb}
            """)
        nb = 0
        VM = []
        late = False
        for it in self.pre.split():
            L = []
            if it == "|":
                late = True
            elif it[0] == "c":
                c = int(it[1])
                for k, l in enumerate(self.w1_loads(c, sWo if c else sW1)):
                    L.append((f"s_add_u32 s{sWo}, s{sW1}, {21504 * c}" if c and not k else "", l, None, 55 * c - 30))
            elif it[0] == "B":
                for _ in range(int(it[1:])):
                    L.append(self.xb_item(nb) + ("X%d" % nb, self.bdl))
                    nb += 1
            elif it == "T":
                L.append(("", f"buffer_load_dword v{vT2a + 1}, v{vT2a}, {srd(SW2R)}, 0 offen", None, 100))
            elif it == "S":
                for grp in self.setup2():
                    e("\n".join(grp))
            for a, b, name, dl in L:
                if late:
                    VM.append((0, ([F(a, 0)] if a else []) + [F(b, 0, dl, cb=(lambda tok, name=name: K.__setitem__(name, tok)))]))
                else:
                    e(a)
                    K[name] = e(b)
            if not late:
                self.stamp("p" + it)
        assert nb == 12
        self.stamp("iss")
        e.wait_tok(K["A"])
        self.stamp("xland")
        seq = sorted([(s, r) for s in range(5) for r in range(11)], key=lambda x: (x[0] + x[1], x[0]))
        seq += [(s, r) for s in range(5, 31) for r in range(11)]
        seq += [(s, r) for r in range(11) for s in range(31, 35)]

        def frag(s, r):
            if s < 16:
                return (0, r + s)
            if s < 31:
                return (1, r + s - 16)
            return (2, r + s - 31)
        first, last = {}, {}
        for i, (s, r) in enumerate(seq):
            f = frag(s, r)
            first.setdefault(f, i)
            last[f] = i
        order = sorted(first, key=lambda f: first[f])
        free = [(-1, k) for k in range(NSLOT)]
        slot = {}
        rd = []
        LEAD = 26
        for n, f in enumerate(order):
            free.sort()
            avail, k = free.pop(0)
            slot[f] = k
            free.append((last[f], k))
            pos = max(avail, first[f] - LEAD, 0)
            if f[0] == 1 and f[1] <= 10:
                pos = max(avail, first[(1, 0)] - self.lb + (self.lb - 10) * f[1] // 11)
            if f[0] == 1 and f[1] > 10:
                pos = max(avail, min(pos, self.bend - self.bstep * (24 - f[1])))
            if n < 5:
                pos = -1
            a, o = [(vXa0, L_XA), (vXa0, L_XB), (vXa2, 0)][f[0]]
            rd.append((pos, f, F(f"ds_read_b128 {vr(RING + 4 * k)}, v{a} offset:{o + 64 * f[1]}", pos, max(first[f] - 8, pos + 1), lds=32)))
        rd.sort(key=lambda x: x[0])
        RD = []
        for pos, f, it in rd:
            if f == (1, 0):
                RD.append(F((lambda: e.wait_tok(K["X11"])), pos, cost=4))
            RD.append(it)
        CK = [F(l, -1) for l in self.checksum(WBUF)]
        CK += [F(lambda: self.w1_check(0), -1), F(lambda: self.stamp("c0ok"), -1)]
        V2 = []
        for k in range(12, 15):
            a, b = self.xb_item(k)
            pos = self.cpos + 4 * (k - 12)
            V2.append((pos, [F(a, pos), F(b, pos, pos + self.w2dl, cb=(lambda tok, k=k: K.__setitem__("X%d" % k, tok)))]))
        for c in range(7):
            base = 55 * c
            if c + 2 < 7 and c:
                for k, l in enumerate(self.w1_loads(c + 2, sWo)):
                    pos = base + 4 * k
                    VM.append((pos, ([F(f"s_add_u32 s{sWo}, s{sW1}, {21504 * (c + 2)}", max(pos - 3, 0))] if k == 0 else []) + [F(l, pos, pos + (self.w1dl if c > 1 else 40))]))
            if c < 6:
                for k, l in enumerate(self.checksum(WBUF + 20 * ((c + 1) % 3))):
                    CK.append(F(l, base + 38 + k // 2))
                CK.append(F((lambda c=c: self.w1_check(c + 1)), base + 48, base + 55, cost=8))
                CK.append(F((lambda c=c: self.stamp(f"c{c + 1}ok", 2)), base + 48, base + 55))
        w2p = [p0 + 4 * k for p0, cnt in self.w2p for k in range(cnt)]
        assert len(w2p) == 36
        for i, pos in enumerate(w2p):
            b, q = divmod(i, 9)
            L = []
            for lim, sl in ((12, 0), (24, 1)):
                if i == lim:
                    last_rd = [it for _, f, it in rd if f[0] == sl][-1]
                    last_rd.cb = lambda tok, sl=sl: K.__setitem__("rd%d" % sl, tok)
                    assert last_rd.dl + 8 < pos or last_rd.pos + 12 < pos, (last_rd.pos, pos)
                    last_rd.dl = min(last_rd.dl, pos - 8)
                    L.append(F((lambda sl=sl: e.wait_tok(K["rd%d" % sl])), pos - 2, after=(last_rd, 6)))
            if q in (0, 4, 5):
                L.append(F(f"s_add_u32 m0, s{sReg}, {1024 * i}" + (f"\ns_mov_b32 s{sG2}, {82944 * b}" if q == 0 else ""), pos - 2))
            r, o = (0, q) if q < 4 else (1, 0) if q == 4 else (2, q - 5)
            L.append(F(f"buffer_load_dwordx4 v{W2R + r}, {srd(SW2R)}, s{sG2} offen offset:{1024 * o} lds", pos, pos + self.w2dl,
                       cb=(lambda tok, i=i: K.__setitem__("d%d" % i, tok))))
            V2.append((pos, L))

        def w2_reads(b):
            L = [f"ds_read_b64_tr_b16 {ar(A_W2 + 4 * b + 2 * h, 2)}, v{W2T + 3} offset:{9216 * b + 2304 * h + 256}" for h in range(2)]
            for wq in range(4):
                for ab in range(2):
                    for h in range(2):
                        o = REGW * wq + 9216 * b + 2304 * h + 32 * ab
                        L.append(f"ds_read_b64_tr_b16 {ar(A_W2 + 16 + 8 * (4 * wq + b) + 4 * ab + 2 * h, 2)}, v{W2T + o // 49152} offset:{o % 49152}")
            return L
        W2 = []
        done = 0
        bars = []
        for u, (bp, nbat) in enumerate(self.bars):
            def bar(u=u, upto=done + nbat):
                self.stamp("preb%d" % u)
                e.wait_tok(K["d%d" % (9 * upto - 1)])
                if u == self.cbar:
                    e.wait_tok(K["X14"])
                if "w2r" in K:
                    e.wait_tok(K["w2r"])
                e("s_barrier")
                self.stamp("b%d" % u)
            assert w2p[9 * (done + nbat) - 1] + self.w2dl < bp
            bars.append(F(bar, bp, bp + 2, cost=4))
            W2.append(bars[-1])
            end = self.bars[u + 1][0] - 8 if u + 1 < len(self.bars) else self.rend
            L = [l for b in range(done, done + nbat) for l in w2_reads(b)]
            for k, l in enumerate(L):
                p = bp + 1 + (end - 6 - bp) * k // len(L)
                W2.append(F(l, min(p, bp + 2 * k), p + 6, cb=(lambda tok: K.__setitem__("w2r", tok))))
            done += nbat
        self.w2left = [l for b in range(done, 4) for l in w2_reads(b)]
        assert sum(n for _, n in self.bars[:-1]) >= 2 and self.bars[-1][0] + 2 < 349
        for _, f, it in rd:
            if f[0] == 2:
                assert it.pos > self.bars[self.cbar][0] + 2
        if self.tch:
            VM.append((self.tch, [F(f"buffer_load_dword v{vTch + 1}, v{vTch}, {srd(SWF)}, 0 offen", self.tch),
                                  F(f"buffer_load_dword v{vTch + 2}, v{vTch}, {srd(SWO)}, 0 offen", self.tch)]))
        self.w2late = []
        SU = []
        if "S" not in self.pre.split():
            p = self.spos
            for grp in self.setup2():
                nv = sum(l.startswith("v_") for l in grp)
                if p % 55 + nv > 46:
                    p = p // 55 * 55 + 55
                for l in grp:
                    if l.startswith("s_cselect"):
                        SU[-1].item += "\n" + l
                    else:
                        SU.append(F(l, p // 55 * 55, p // 55 * 55 + 47))
                p += nv
            if self.log:
                print("  late set-up ends near", p)
        if self.clr and self.clr != -1:
            for c, l in enumerate(self.clears()):
                VM.append((self.clr[c], [F(l, self.clr[c], self.clr[c] + 10, cb=(lambda tok: K.__setitem__("clr", tok)))]))
        VM.sort(key=lambda x: x[0])
        VM = [f for _, L in VM for f in L]
        V2.sort(key=lambda x: x[0])
        V2 = [f for _, L in V2 for f in L]
        WR = [F(f"ds_write_b128 v{vRedW}, {ar(A_ACC + 4 * r)} offset:{1024 * r}", 341 + 4 * r + 3 + 5) for r in range(11)]
        mf = []
        for s, r in seq:
            w = WBUF + 20 * ((s // 5) % 3) + 4 * (s % 5)
            acc = ar(A_ACC + 4 * r)
            mf.append(f"v_mfma_f32_16x16x32_bf16 {acc}, {vr(w)}, {vr(RING + 4 * slot[frag(s, r)])}, {acc if s else '0'}")
        S = [RD, CK, W2, WR, VM, V2, SU]
        self.posstamps("u", S)
        weave2(e, mf, S, log=self.log and "conv1")
        assert max([f.at for f in VM if not callable(f.item) and " lds" in f.item] + [-1]) < V2[0].at
        wr = {}
        for f in SU:
            for l in f.item.split("\n"):
                for r in Ins(l).dst:
                    wr[r] = f.ln
        for st in S:
            for f in st:
                if st is not SU and not callable(f.item):
                    for l in f.item.split("\n"):
                        x = Ins(l)
                        for r in x.src + x.dst:
                            assert wr.get(r, -1) < f.ln, (l, f.at)
        if self.log:
            print("  v2 at:", [f.at for f in V2 if not callable(f.item) and f.item.startswith("buffer")])
            print("  w2 at:", [f.at for f in W2], "su", SU[-1].at if SU else None)
        if self.log:
            print("  vm at:", [f.at for f in VM if not callable(f.item) and f.item.startswith("buffer")])

    def dma_w(self, s, ldsbase):
        t = sT
        L = []
        for k in range(11):
            pre = ""
            if k % 4 == 0:
                pre = f"s_add_u32 s{t + 4}, s{t + 3}, {1024 * k}\ns_add_u32 m0, s{t + 3}, {ldsbase + 1024 * k}"
            L.append((pre, f"buffer_load_dwordx4 v{vL16}, {srd(s)}, s{t + 4} offen offset:{1024 * (k % 4)} lds"))
        return L

    def transition(self):
        e = self.e
        t = sT
        K = self.tok
        self.stamp("c1end", 2)
        e(f"s_mul_i32 s{t + 3}, s{sW}, 11264")
        e.wait_tok(K["d35"])
        e.wait(lg=0)
        e("s_barrier")
        self.stamp("B2")
        R = RING
        q = [(l, None) for l in self.w2late]
        for it in self.trq:
            if it == "c" and not self.clr:
                q += [(l, "clr") for l in self.clears()]
            if it == "f":
                q += [((a + "\n" + b).strip(), "wf") for a, b in self.dma_w(SWF, L_WF)]
            if it == "o":
                q += [((a + "\n" + b).strip(), "wo") for a, b in self.dma_w(SWO, L_WO)]
        self.vq = q
        assert all(name == "clr" for _, name in q[:self.trd])
        real = self.e
        clock = dict(t=0, ta=0, n=0)

        def ee(text):
            for l in text.split("\n"):
                real(l)
                clock["t"] += icost(Ins(l))
                if q and clock["n"] < self.trd and clock["t"] >= clock["ta"]:
                    l2, name = q.pop(0)
                    K[name] = real(l2)
                    clock["n"] += 1
                    st = "store" in l2
                    clock["ta"] = clock["t"] + (128 if st else 64)
                    clock["t"] += 29 if st else 12
        for k in range(3):
            for s_ in range(4):
                e(f"ds_read_b128 {vr(R + 16 * k + 4 * s_)}, v{vFree if s_ > 1 else vRedR} offset:{REGW * (s_ & 1) + 1024 * k}")
        for l in self.w2left[:self.trl[0]]:
            e(l)
        if q and self.trd:
            l2, name = q.pop(0)
            K[name] = e(l2)
            clock["n"] += 1
        self.e = ee
        for k in range(3):
            b = R + 16 * k
            for h in (0, 2):
                ee(f"v_pk_add_f32 {vr(b + h, 2)}, {vr(b + h, 2)}, {vr(b + 4 + h, 2)}")
                ee(f"v_pk_add_f32 {vr(b + 8 + h, 2)}, {vr(b + 8 + h, 2)}, {vr(b + 12 + h, 2)}")
            for h in (0, 2):
                ee(f"v_pk_add_f32 {vr(b + h, 2)}, {vr(b + h, 2)}, {vr(b + 8 + h, 2)}")
        pairs = [R + 16 * k + h for k in range(3) for h in (0, 2)]
        self.gelu_pairs(pairs, [p + 4 for p in pairs])
        self.e = real
        for k in range(3):
            b = R + 16 * k
            e(f"v_cvt_pk_bf16_f32 v{b}, v{b}, v{b + 1}\nv_cvt_pk_bf16_f32 v{b + 1}, v{b + 2}, v{b + 3}")
            e(f"v_cndmask_b32_e64 v{b}, 0, v{b}, s[{sMask + 2 * k}:{sMask + 2 * k + 1}]")
            e(f"v_cndmask_b32_e64 v{b + 1}, 0, v{b + 1}, s[{sMask + 2 * k}:{sMask + 2 * k + 1}]")
            e(f"ds_write_b64 v{vHw3 + k}, {vr(b, 2)}")
        for l in self.w2left[self.trl[0]:]:
            e(l)
        e.wait(lg=0)
        self.stamp("gelu", 2)
        e("s_barrier")
        self.stamp("B3", 2)

    def wf_reg(self, eps, s):
        if s < 4:
            i = 4 * (4 * eps + s)
            return ("a", A_WF + i) if i < 112 else ("v", VWF + i - 112)
        return ("v", VWF + 32 + 2 * eps)

    def wo_reg(self, tile, s):
        if s < 4:
            return ("a", 4 * (9 * s + tile))
        return ("v", 46 + 2 * tile)

    @staticmethod
    def rr(fb, off, n):
        return f"{fb[0]}[{fb[1] + off}:{fb[1] + off + n - 1}]"

    def conv2(self):
        e = self.e
        t = sT
        K = self.tok
        BM, B9, ACC9, TMP, ACC = 46, 126, 162, 182, 190
        mf = []
        n9 = sorted([(k, r) for k in range(4) for r in range(5)], key=lambda x: (x[0] + x[1], x[0]))
        for k, r in n9:
            acc = vr(ACC9 + 4 * r)
            mf.append(f"v_mfma_f32_16x16x32_bf16 {acc}, {ar(A_W2 + 4 * k)}, {vr(B9 + 4 * (r + k))}, {acc if k else '0'}")
        for r in range(5):
            for k in range(16):
                for ab in range(2):
                    acc = vr(ACC + 8 * (r & 1) + 4 * ab)
                    mf.append(f"v_mfma_f32_16x16x32_bf16 {acc}, {ar(A_W2 + 16 + 8 * k + 4 * ab)}, {vr(BM + 4 * (r + k))}, {acc if k else '0'}")
        RD = []
        for i in range(8):
            dl = min(n for n, (k, r) in enumerate(n9) if k + r == i)
            RD.append(F(f"ds_read_b128 {vr(B9 + 4 * i)}, v{vH94 + [0, 1, 2, 3, 3, 0, 1, 2][i]} offset:{64 * i + (32 if i > 4 else 0)}",
                        -1 if i < 4 else 0, max(dl - 6, 1)))
        for i in range(20):
            dl = 20 + 2 * i if i < 16 else 20 + 32 * (i - 15) + 30
            RD.append(F(f"ds_read_b128 {vr(BM + 4 * i)}, v{vHr} offset:{64 * i + 32 * (i // 5)}", 0, dl - 8))
        PB = self.pb
        N9 = [F(f"ds_write_b128 v{vN9W}, {vr(ACC9 + 4 * r)} offset:{1024 * r}", 30 + 5 * r, PB - 6) for r in range(5)]
        VM = []
        for n, (l, name) in enumerate(self.vq):
            L = l.split("\n")
            if len(L) > 1:
                VM.append(F("\n".join(L[:-1]), 0))
            VM.append(F(L[-1], 0, {"clr": 40, "wf": PB - 20, "wo": 150, None: 10}[name], cb=(lambda tok, name=name: K.__setitem__(name, tok))))
        PS = [F(f"s_lshl_b32 s{t + 2}, s{sW}, 9\ns_add_u32 s{t + 2}, s{t + 2}, s{sP}", 40),
              F(f"s_mul_i32 s{t}, s{sG}, 9\ns_add_u32 s{t}, s{t}, s{sJ}\ns_lshl_b32 s{t}, s{t}, 7", 40),
              F(f"s_add_u32 s{t}, s{t}, {WS_FCL}\nv_mov_b32 v{vCs}, s{sN}", 40),
              F(lambda: e.wait_tok(K["clr"]) if "clr" in K else None, 50, cost=4)]
        for r in range(5):
            end = 20 + 32 * r + 31
            a = ACC + 8 * (r & 1)
            d = TMP + 4 * (r & 1)
            for q in range(4):
                PS.append(F(f"v_cvt_pk_bf16_f32 v{d + q}, v{a + 2 * q}, v{a + 2 * q + 1}", end + 4, end + 24))
            va, o = (vPst, 1024 * r) if r < 2 else (vPstB, 1024 * r - 2048)
            PS.append(F(f"buffer_store_dwordx4 {vr(d)}, v{va}, {srd(SWS)}, s{sPw} offen offset:{o} sc1", end + 4, end + 26,
                        cb=(lambda tok: K.__setitem__("pst", tok))))

        def bar4():
            self.stamp("preB4", 2)
            e.wait_tok(K["wf"])
            e.wait(lg=0)
            e("s_barrier")
            self.stamp("B4", 2)
        b4 = F(bar4, PB, PB + 1, cost=8)
        N9.append(b4)

        def flag():
            e(f"s_cmp_eq_u32 s{sW}, 0\ns_cbranch_scc0 L_nf\ns_mov_b64 exec, 1")
            e(f"buffer_store_dword v{vCs}, off, {srd(SWS)}, s{t} sc1")
            e.vm.pop()
            e("s_mov_b64 exec, -1")
            e.label("L_nf")
        N9.append(F(flag, PB + 1, PB + 2, cost=8))
        for s_ in range(4):
            N9.append(F(f"ds_read_b128 {vr(B9 + 4 * s_)}, v{vN9R} offset:{5120 * s_}", PB + 2, PB + 20))
        for s_ in range(4):
            N9.append(F(f"ds_read_b128 {vr(B9 + 16 + 4 * s_)}, v{vRedL} offset:{5120 * s_ + 4096}", PB + 2, PB + 20))
        p = PB + 20
        for hb in (B9, B9 + 16):
            for q in range(4):
                N9.append(F(f"v_add_f32 v{hb + q}, v{hb + q}, v{hb + 4 + q}", p))
                N9.append(F(f"v_add_f32 v{hb + 8 + q}, v{hb + 8 + q}, v{hb + 12 + q}", p))
            for q in range(4):
                N9.append(F(f"v_add_f32 v{hb + q}, v{hb + q}, v{hb + 8 + q}", p))
            N9.append(F(f"v_cvt_pk_bf16_f32 v{hb}, v{hb}, v{hb + 1}", p))
            N9.append(F(f"v_cvt_pk_bf16_f32 v{hb + 1}, v{hb + 2}, v{hb + 3}", p))
        N9.append(F(f"buffer_store_dwordx2 {vr(B9, 2)}, v{vPst9}, {srd(SWS)}, s{t + 2} offen sc1", p, 172))
        N9.append(F(f"buffer_store_dwordx2 {vr(B9 + 16, 2)}, v{vP94}, {srd(SWS)}, s{sP} offen offset:2048 sc1", p, 176, ta=16))
        WF = []
        for eps in range(9):
            for s_ in range(5):
                fb = self.wf_reg(eps, s_)
                for h in range(2 if s_ < 4 else 1):
                    WF.append(F(f"ds_read_b64_tr_b16 {self.rr(fb, 2 * h, 2)}, v{vT1} offset:{L_WF + (32 * s_ + 16 * h) * 288 + 32 * eps}", PB + 1, after=(b4, 1)))
        self.wf_left = [f.item for f in WF[81 - self.wfl:]]
        WF = WF[:81 - self.wfl]
        WF[-1].dl = 180
        FL = [F(f"v_mov_b32 v{vSent + q}, 0x3f803f80", PB + 2) for q in range(4)]
        FL.append(F(f"buffer_load_dword v{vCs}, v{vFlC}, {srd(SWS)}, 0 offen sc1", self.fpos, self.fpos + 6))
        S = [RD, PS, VM, N9, FL, WF]
        self.posstamps("v", S)
        weave2(e, mf, S, log=self.log and "conv2", soft=[WF])
        if self.log:
            print("  vm at:", [f.at for f in VM if f.item.startswith("buffer")], "wf", WF[0].at, WF[-1].at, "n9", N9[-1].at)

    def joint(self):
        e = self.e
        t = sT
        K = self.tok
        Z, PL, D, FB, TM, JP, OA, OP = 126, 64, 88, 96, 114, 64, 170, 96
        self.stamp("c2end")
        e.wait_tok(K["wo"])
        e("s_barrier")
        self.stamp("B5", 2)
        self.flag_check("L_r3", vFlC, vCs)
        self.stamp("F", 2)
        ge = [f"buffer_load_dwordx4 {vr(Z + 4 * eps)}, v{vGe}, {srd(SWS)}, s{sGeO} offen offset:{512 * (eps & 7)} sc1" for eps in range(9)]
        ge[8] = f"s_add_u32 s{sGeO}, s{sGeO}, 4096\n" + ge[8]

        def ploads():
            for L in range(5):
                e(f"s_add_u32 s{t}, s{sPc}, {2 * PSTR * L}")
                e(f"buffer_load_dwordx4 {vr(PL + 4 * L)}, v{vPl if L < 4 else vPl4}, {srd(SWS)}, s{t} offen sc1")
            for N in range(3):
                e(f"s_add_u32 s{t}, s{sPc}, {4 * PSTR * N}")
                e(f"buffer_load_dword v{PL + 20 + N}, v{vPl9 if N < 2 else vPl9b}, {srd(SWS)}, s{t} offen sc1")

        def pcheck():
            e(f"v_max3_u32 v{vCs}, v{PL}, v{PL + 1}, v{PL + 2}")
            for i in range(10):
                e(f"v_max3_u32 v{vCs}, v{vCs}, v{PL + 3 + 2 * i}, v{PL + 4 + 2 * i}")
            e(f"v_cmp_eq_u32 vcc, -1, v{vCs}")
        e(f"v_mov_b32 v{PL + 23}, 0")
        reads, mf = list(self.wf_left), []
        for s in range(5):
            for tile in range(9):
                fb = self.wo_reg(tile, s)
                for h in range(2 if s < 4 else 1):
                    row = (32 * s + 16 * h) * 288
                    if tile < 8:
                        reads.append(f"ds_read_b64_tr_b16 {self.rr(fb, 2 * h, 2)}, v{vT2} offset:{row + 64 * (tile >> 1) + 8 * (tile & 1)}")
                    else:
                        reads.append(f"ds_read_b64_tr_b16 {self.rr(fb, 2 * h, 2)}, v{vT1o} offset:{row + 256}")
                acc = vr(OA + 4 * tile)
                if s < 4:
                    mf.append((len(reads), f"v_mfma_f32_16x16x32_bf16 {acc}, {self.rr(fb, 0, 4)}, {vr(vSent)}, {acc if s else '0'}"))
                else:
                    mf.append((len(reads), f"v_mfma_f32_16x16x16_bf16 {acc}, {self.rr(fb, 0, 2)}, {vr(vSent, 2)}, {acc}"))
        mi = 0
        for i, l in enumerate(reads):
            if i == self.plpos:
                self.stamp("prePL", 2)
                e.wait_tok(K["pst"])
                self.stamp("PL", 2)
                ploads()
            if ge and i % self.gestep == 0 and not self.plpos - 4 < i < self.plpos + 8:
                e(ge.pop(0))
            e(l)
            while mi < len(mf) and mf[mi][0] + 12 <= i + 1:
                e(mf[mi][1])
                mi += 1
        while mi < len(mf):
            e(mf[mi][1])
            mi += 1
        assert not ge
        self.stamp("cs", 2)
        pcheck()
        e("s_cbranch_vccnz L_r4")
        e.label("L_r4_back")

        def body():
            ploads()
            e.wait(vm=0)
            pcheck()
        self.add_stub("L_r4", body)
        self.stamp("pok")
        e(f"v_mfma_f32_16x16x32_bf16 {vr(D + 4)}, {vr(vA9)}, {vr(PL + 20)}, 0")
        for L in range(5):
            e(f"v_mfma_f32_16x16x32_bf16 {vr(D)}, {vr(vAI)}, {vr(PL + 4 * L)}, {vr(D) if L else '0'}")
        e(f"s_or_b32 s{t}, s{sG}, s{sJ}\ns_or_b32 s{t}, s{t}, s{sW}\ns_cmp_eq_u32 s{t}, 0\ns_cbranch_scc0 L_ne")
        snap = e.snapshot()
        e(f"v_mov_b32 v{vCs}, s{sN}\ns_mov_b64 exec, 1")
        e(f"buffer_store_dword v{vCs}, off, {srd(SWS)}, 0 sc1")
        e("s_mov_b64 exec, -1")
        e.label("L_ne")
        e.restore(snap)
        self.gelu_pairs([D + 4, D, D + 2], [TM, TM + 2, TM + 4], scaled=True)
        e(f"v_cvt_pk_bf16_f32 v{D + 4}, v{D + 4}, v{D + 4}")
        e(f"v_cvt_pk_bf16_f32 v{D}, v{D}, v{D + 1}\nv_cvt_pk_bf16_f32 v{D + 1}, v{D + 2}, v{D + 3}")
        e(f"ds_write_b16 v{vFw9}, v{D + 4}\nds_write_b64 v{vFw}, {vr(D, 2)}")
        e(f"ds_read_b64 {vr(FB + 16, 2)}, v{vFr9}")
        for s in range(4):
            e(f"ds_read_b128 {vr(FB + 4 * s)}, v{vFr} offset:{64 * s}")
        self.stamp("fb", 2)
        M = []
        V = []
        zend = {}
        tend = {}
        n = 0
        for eps in range(9):
            n += 14
            tend[eps] = n
        order = ["H0", "H1", "H2", "H3", "H4", "H5", "Z0", "Z1", "Z2", "H6", "H7", "H8", "Z3", "Z4", "O0", "Z5", "Z6", "O1",
                 "Z7", "Z8", "O2", "O3", "O4"]
        oend = {}
        for it in order:
            k = int(it[1])
            if it[0] == "H":
                acc = vr(Z + 4 * k)
                M.append((f"v_mfma_f32_16x16x16_bf16 {acc}, {self.rr(self.wf_reg(k, 4), 0, 2)}, {vr(FB + 16, 2)}, {acc}", 0))
            elif it[0] == "Z":
                acc = vr(Z + 4 * k)
                for s in range(4):
                    fb = self.wf_reg(k, s)
                    M.append((f"v_mfma_f32_16x16x32_bf16 {acc}, {self.rr(fb, 0, 4)}, {vr(FB + 4 * s)}, {acc}", 0))
                zend[k] = len(M)
            else:
                for tile in range(9):
                    fb = self.wo_reg(tile, k)
                    acc = vr(OA + 4 * tile)
                    if k < 4:
                        M.append((f"v_mfma_f32_16x16x32_bf16 {acc}, {self.rr(fb, 0, 4)}, {vr(JP + 4 * k)}, {acc}", tend[2 * k + 1]))
                    else:
                        M.append((f"v_mfma_f32_16x16x16_bf16 {acc}, {self.rr(fb, 0, 2)}, {vr(JP + 16, 2)}, {acc}", tend[8]))
                    oend[tile] = len(M)
        for eps in range(9):
            z = Z + 4 * eps
            for q in range(4):
                V.append((f"v_exp_f32 v{z + q}, v{z + q}", 2, zend[eps] + (5 if eps == 0 else 3)))
            for q in range(4):
                V.append((f"v_fma_f32 v{z + q}, v{z + q}, -0.5, -0.5", 1, 0))
            for q in range(4):
                V.append((f"v_rcp_f32 v{z + q}, v{z + q}", 2, 0))
            V.append((f"v_cvt_pk_bf16_f32 v{JP + 2 * eps}, v{z}, v{z + 1}", 1, 0))
            V.append((f"v_cvt_pk_bf16_f32 v{JP + 2 * eps + 1}, v{z + 2}, v{z + 3}", 1, 0))
        fl = self.outflags
        for p in range(5):
            tiles = (2 * p, 2 * p + 1) if p < 4 else (8,)
            for i, tile in enumerate(tiles):
                a = OA + 4 * tile
                rdy = min(oend[tile] + 4, len(M))
                V.append((f"v_cvt_pk_bf16_f32 v{OP + 4 * p + 2 * i}, v{a}, v{a + 1}", 1, rdy))
                V.append((f"v_cvt_pk_bf16_f32 v{OP + 4 * p + 2 * i + 1}, v{a + 2}, v{a + 3}", 1, rdy))
            if p < 4:
                V.append((f"buffer_store_dwordx4 {vr(OP + 4 * p)}, v{vOut}, {srd(SOUT)}, 0 offen offset:{64 * p} {fl}", 1, 0))
            else:
                V.append((f"buffer_store_dwordx2 {vr(OP + 16, 2)}, v{vOut9}, {srd(SOUT)}, 0 offen {fl}", 1, 0))
        mi = vi = 0
        credit = 0.0
        while mi < len(M) or vi < len(V):
            m_ok = mi < len(M) and M[mi][1] <= vi
            v_ok = vi < len(V) and V[vi][2] <= mi
            if m_ok and (credit <= 0 or not v_ok):
                e(M[mi][0])
                mi += 1
                credit = min(credit, 0) + 2.7
            else:
                assert v_ok, (mi, vi)
                e(V[vi][0])
                credit -= V[vi][1]
                vi += 1

    def epilogue(self):
        e = self.e
        if self.stamps:
            self.stamp("issued")
            e.wait(vm=0)
            self.stamp("drained")
            e("s_memrealtime s[62:63]")
            e.wait(lg=0)
            for i in range(13):
                e(f"v_mov_b32 v{46 + i}, s{self.SLOTS[i]}")
            e(f"v_mov_b32 v74, s96\nv_mov_b32 v75, s62\nv_mov_b32 v76, s{sSpin}\nv_mov_b32 v77, s94")
            e(f"s_lshl_b32 s61, s2, 2\ns_add_u32 s61, s61, s{sW}\ns_lshl_b32 s61, s61, 7\ns_add_u32 s61, s61, {WS_DBG}")
            e("s_mov_b64 exec, 1")
            for i in range(8):
                e(f"buffer_store_dwordx4 {vr(46 + 4 * i)}, off, {srd(SWS)}, s61 offset:{16 * i}")
            if self.dbgwg is not None:
                self.mk_srd(SW1R, 20, 256)
                e(f"s_cmp_eq_u32 s61, {WS_DBG + 512 * self.dbgwg + 256}\ns_cbranch_scc0 L_exit")
                for i in range(1, 16):
                    e(f"v_sub_u32 v{46 + i}, v{46 + i}, v46")
                e("v_sub_u32 v46, v75, v74")
                for i in range(4):
                    e(f"buffer_store_dwordx4 {vr(46 + 4 * i)}, off, {srd(SW1R)}, 0 offset:{16 * i}")
            e.raw("; STAMPS " + " ".join(self.stnames))
        if self.hold:
            e("s_mov_b32 s64, 0")
            e.label("L_hold")
            e("s_memrealtime s[62:63]\ns_add_u32 s64, s64, 1\ns_sub_u32 s62, s62, s96")
            e(f"s_cmp_gt_u32 s64, 100000\ns_cbranch_scc1 L_exit\ns_cmp_lt_u32 s62, {self.hold}\ns_cbranch_scc1 L_hold")
        e.label("L_exit")
        e("s_endpgm")

    def emit_stubs(self):
        e = self.e
        for name, body in self.stubs:
            e.label(name)
            e.forget()
            e("s_nop 7")
            body()
            e(f"s_add_u32 s{sSpin}, s{sSpin}, 1")
            e(f"s_cbranch_vccz {name}_back")
            e(f"s_cmp_lt_u32 s{sSpin}, {SPIN}\ns_cbranch_scc1 {name}\ns_branch {name}_back")

    def spare(self):
        e = self.e
        t = sT
        e.label("L_spare")
        e.forget()
        e(f"s_load_dword s{sN}, s[22:23], 0")
        if self.xt:
            e(f"s_add_u32 s{SX}, s4, s{t + 7}\ns_addc_u32 s{SX + 1}, s5, 0")
            if self.xt == 1:
                e(f"buffer_load_dword v254, v50, {srd(SX)}, 0 offen")
            else:
                self.xtouch()
        self.mk_srd(SWS, 22, 0x10000000)
        if self.stch:
            self.mk_srd(SOUT, 12, 41472)
            self.mk_srd(SW2R, 16, 41472)
            e(f"s_mul_i32 s{t}, s{sQ}, 81\nv_min_u32 v253, 80, v0\nv_add_lshl_u32 v253, v253, s{t}, 7")
        SWG, SGG = SWF, SWO
        self.mk_srd(SWG, 14, 41472)
        self.mk_srd(SGG, 10, 4608)
        e(f"s_mul_i32 s{t + 3}, s{sW}, 11264")
        for a, b in self.dma_w(SWG, 0):
            e(a + "\n" + b)
        e(f"""
        v_and_b32 v46, 7, v{vLane}
        v_lshrrev_b32 v47, 4, v{vLane}
        v_mul_u32_u24 v48, 288, v46
        v_lshl_add_u32 v48, v47, 3, v48
        s_mul_i32 s{t}, s{sB}, 2304
        """)
        for s in range(4):
            for h in range(2):
                e(f"buffer_load_dwordx2 {vr(60 + 4 * s + 2 * h, 2)}, v48, {srd(SGG)}, s{t} offen offset:{64 * s + 32 * h}")
        e(f"buffer_load_dwordx2 {vr(76, 2)}, v48, {srd(SGG)}, s{t} offen offset:256")
        if self.stch:
            e(f"buffer_load_dword v252, v253, {srd(SOUT)}, 0 offen\nbuffer_load_dword v251, v253, {srd(SW2R)}, 0 offen")
        e(f"""
        v_lshrrev_b32 v49, 2, v{vLane}
        v_mul_u32_u24 v49, 288, v49
        v_and_b32 v50, 3, v{vLane}
        v_lshl_add_u32 v49, v50, 3, v49
        s_lshl_b32 s{t + 1}, s{sW}, 5
        v_add_u32 v49, s{t + 1}, v49
        v_lshlrev_b32 v51, 4, v46
        v_lshl_add_u32 v51, v47, 7, v51
        s_mul_i32 s{t + 2}, s{sQ}, 4608
        s_add_u32 s{t + 2}, s{t + 2}, {WS_GE}
        s_lshl_b32 s{t + 1}, s{sW}, 9
        s_add_u32 s{t + 2}, s{t + 2}, s{t + 1}
        s_mov_b32 s{t + 5}, s{sW}
        s_mul_i32 s{sN}, s{sN}, 1664525
        s_add_u32 s{sN}, s{sN}, 1013904223
        v_mov_b32 v52, s{sN}
        """)
        e.wait(vm=0)
        e("s_barrier")
        e.label("L_sp1")
        e.forget()
        for s in range(5):
            for h in range(2 if s < 4 else 1):
                e(f"ds_read_b64_tr_b16 {vr(80 + 4 * s + 2 * h, 2)}, v49 offset:{(32 * s + 16 * h) * 288}")
        for s in range(4):
            e(f"v_mfma_f32_16x16x32_bf16 v[100:103], {vr(80 + 4 * s)}, {vr(60 + 4 * s)}, {'v[100:103]' if s else '0'}")
        e("v_mfma_f32_16x16x16_bf16 v[100:103], v[96:97], v[76:77], v[100:103]")
        for q in range(4):
            e(f"v_mul_f32 v{104 + q}, {f32(S2)}, v{100 + q}")
        e(f"buffer_store_dwordx4 v[104:107], v51, {srd(SWS)}, s{t + 2} offen sc1")
        e(f"""
        v_add_u32 v49, 128, v49
        s_add_u32 s{t + 2}, s{t + 2}, 2048
        s_add_u32 s{t + 5}, s{t + 5}, 4
        s_cmp_lt_u32 s{t + 5}, 9
        s_cbranch_scc1 L_sp1
        """)
        e.wait(vm=0)
        e("s_barrier")
        e(f"""
        s_cmp_eq_u32 s{sW}, 0
        s_cbranch_scc0 L_sp2
        s_add_u32 s{t}, s{sQ}, {252 + WS_FCL // 128}
        s_lshl_b32 s{t}, s{t}, 7
        s_mov_b64 exec, 1
        buffer_store_dword v52, off, {srd(SWS)}, s{t} sc1
        """)
        e.label("L_sp2")
        e("s_endpgm")

    def build(self):
        e = self.e
        e.raw(f"; @launch grid=(256,1,1) block=(256,1,1) lds={LDS_SIZE}")
        e.raw('.amdgcn_target "amdgcn-amd-amdhsa--gfx950"')
        e.raw(f".text\n.globl {KN}\n.p2align 8\n.type {KN},@function\n{KN}:")
        e(f"s_mov_b32 s{sSpin}, 0")
        self.prologue()
        self.setup()
        self.produce()
        self.conv1()
        self.transition()
        self.conv2()
        self.joint()
        self.epilogue()
        self.emit_stubs()
        self.spare()
        e.label("L_codeend")
        e.raw('.section .rodata,"a"\n.p2align 6')
        e.raw(f".amdhsa_kernel {KN}")
        e.raw("  .amdhsa_next_free_vgpr 512\n  .amdhsa_next_free_sgpr 102\n  .amdhsa_accum_offset 256\n"
              "  .amdhsa_group_segment_fixed_size 0\n  .amdhsa_kernarg_size 80\n  .amdhsa_user_sgpr_count 2\n"
              "  .amdhsa_user_sgpr_kernarg_segment_ptr 1\n  .amdhsa_system_sgpr_workgroup_id_x 1\n.end_amdhsa_kernel")
        return e.text()


if __name__ == "__main__":
    out = sys.argv[1]
    kw = eval("dict(" + (sys.argv[2] if len(sys.argv) > 2 else "") + ")")
    g = Gen(**kw)
    open(out, "w").write(g.build())
    print("written", out, "nops", g.e.nops, "lines", len(g.e.L))
```
